```python
import torch

def _softmax(x, axis=-1):
    return torch.softmax(x, dim=axis)
def _gelu(x):
    return torch.nn.functional.gelu(x, approximate="tanh")
def _silu(x):
    return torch.nn.functional.silu(x)
def _sigmoid(x):
    return torch.sigmoid(x)
def _layernorm(x, axis=-1, eps=1e-5):
    m = x.mean(dim=axis, keepdim=True)
    v = x.var(dim=axis, keepdim=True, unbiased=False)
    return (x - m) / torch.sqrt(v + eps)
def _scatter_add(tgt, idx, src, axis=0):
    return tgt.clone().index_add_(axis, idx, src)
def _segment_sum(src, seg, n):
    out = torch.zeros((n,) + src.shape[1:], dtype=src.dtype)
    return out.index_add_(0, seg, src)
def _pad(x, pw):
    flat = tuple(v for pair in reversed(pw) for v in pair)
    return torch.nn.functional.pad(x, flat)

kernel_name = 'gated_mix__mha_block__compressed_kv_cla__prompt'

def setup_inputs():

    _w = (lambda a: (lambda t: t.to(torch.bfloat16) if t.is_floating_point() else t)(torch.as_tensor(a)))
    def _A_setup():
        B, S, D, H = 1, 2048, 448, 16
        return {
            "x": _w((lambda *s: torch.randn(*s, dtype=torch.bfloat16) * 0.05)(B, S, D)),
            "wqkv": _w((lambda *s: torch.randn(*s, dtype=torch.bfloat16) * 1.6)(D, 3 * D)),
            "wo": _w((lambda *s: torch.randn(*s, dtype=torch.bfloat16) * 0.05)(D, D)),
        }
    _A_in = _A_setup()

    def _B_setup():
        B, H, Sq, Sk, D, M = 1, 16, 2048, 2048, 256, 448
        Dc = 4 * D
        return {
            "x": _w((lambda *s: torch.randn(*s, dtype=torch.bfloat16) * 0.05)(B, Sq, M)),
            "c_kv": _w((lambda *s: torch.randn(*s, dtype=torch.bfloat16) * 1.6)(B, Sk, Dc)),
            "w_q": _w((lambda *s: torch.randn(*s, dtype=torch.bfloat16) * 6.4)(M, H, D) * (M ** -0.5)),
            "w_uk": _w((lambda *s: torch.randn(*s, dtype=torch.bfloat16) * 6.4)(Dc, H, D) * (Dc ** -0.5)),
            "w_uv": _w((lambda *s: torch.randn(*s, dtype=torch.bfloat16) * 1.6)(Dc, H, D) * (Dc ** -0.5)),
            "w_o": _w((lambda *s: torch.randn(*s, dtype=torch.bfloat16) * 1.6)(H, D, M) * ((H * D) ** -0.5)),
        }
    _B_in = _B_setup()

    return {
        "A_x": _A_in["x"],
        "A_wqkv": _A_in["wqkv"],
        "A_wo": _A_in["wo"],
        "B_x": _B_in["x"],
        "B_c_kv": _B_in["c_kv"],
        "B_w_q": _B_in["w_q"],
        "B_w_uk": _B_in["w_uk"],
        "B_w_uv": _B_in["w_uv"],
        "B_w_o": _B_in["w_o"],
        "gate_w": _w((lambda *s: torch.randn(*s, dtype=torch.bfloat16) * 0.05)(448) * 16.0),
    }

def reference(A_x, A_wqkv, A_wo, B_x, B_c_kv, B_w_q, B_w_uk, B_w_uv, B_w_o, gate_w):
    def _A_ref(x, wqkv, wo):
        B, S, D = x.shape
        H = 16
        Dh = D // H
        qkv = (lambda x, *d: x.permute(*d))((x @ wqkv).reshape(B, S, 3, H, Dh), 2, 0, 3, 1, 4)
        q, k, v = qkv[0], qkv[1], qkv[2]
        scores = torch.einsum("bhqd,bhkd->bhqk", q, k) * (Dh ** -0.5)
        p = _softmax(scores, axis=-1)
        o = torch.einsum("bhqk,bhkd->bhqd", p, v)
        return (lambda x, *d: x.permute(*d))(o, 0, 2, 1, 3).reshape(B, S, D) @ wo

    def _B_ref(x, c_kv, w_q, w_uk, w_uv, w_o):
        B, Sq, M = x.shape[0], x.shape[1], x.shape[2]
        Sk = c_kv.shape[1]
        H, D = w_q.shape[1], w_q.shape[2]
        q = torch.einsum("bqm,mhd->bhqd", x, w_q)
        k = torch.einsum("bkc,chd->bhkd", c_kv, w_uk)
        v = torch.einsum("bkc,chd->bhkd", c_kv, w_uv)
        scores = torch.einsum("bhqd,bhkd->bhqk", q, k) * (D ** -0.5)
        off = Sk - Sq
        qi = torch.arange(Sq)[:, None]
        kj = torch.arange(Sk)[None, :]
        cmask = kj <= (qi + off)
        scores = torch.where(cmask[None, None], scores, -1e9)
        p = _softmax(scores, axis=-1)
        ctx = torch.einsum("bhqk,bhkd->bhqd", p, v)
        return torch.einsum("bhqd,hdm->bqm", ctx, w_o)

    x = A_x
    g = _sigmoid((x * gate_w).sum(-1, keepdims=True))
    a = _A_ref(x, A_wqkv, A_wo)
    b = _B_ref(x, B_c_kv, B_w_q, B_w_uk, B_w_uv, B_w_o)
    return g * a + (1 - g) * b
```

```python
class Asm:
    def __init__(self):
        self.lines = []
        self.vq = []
        self._lab = 0

    def e(self, s):
        self.lines.append("    " + s)

    def c(self, s):
        self.lines.append("    ; " + s)

    def label(self, name):
        self.lines.append(name + ":")

    def newlabel(self, base="L"):
        self._lab += 1
        return "%s_%d" % (base, self._lab)

    def raw(self, s):
        self.lines.append(s)

    def text(self):
        return "\n".join(self.lines) + "\n"

    def vm(self, s, tag):
        self.e(s)
        self.vq.append(tag)

    def vm_need(self, pred):
        last = -1
        for i, t in enumerate(self.vq):
            if pred(t):
                last = i
        n = len(self.vq) - 1 - last
        self.vq = self.vq[last + 1:]
        assert n <= 63, n
        return n


def interleave(a, mfmas, fillers, start=0, per_gap=None, end_gap=None):
    n = len(mfmas)
    if end_gap is None:
        end_gap = n
    gaps = end_gap - start
    nf = len(fillers)
    k = 0
    for g, m in enumerate(mfmas):
        emit1(a, m)
        if start <= g < end_gap:
            if per_gap is None:
                tgt = ((g - start + 1) * nf + gaps - 1) // gaps
            else:
                tgt = min(nf, (g - start + 1) * per_gap)
            while k < tgt:
                emit1(a, fillers[k])
                k += 1
    while k < nf:
        emit1(a, fillers[k])
        k += 1


def emit1(a, f):
    if callable(f):
        f()
    else:
        a.e(f)


def vr(base, n=1):
    return "v%d" % base if n == 1 else "v[%d:%d]" % (base, base + n - 1)


def ar(base, n=1):
    return "a%d" % base if n == 1 else "a[%d:%d]" % (base, base + n - 1)


def sr(base, n=1):
    return "s%d" % base if n == 1 else "s[%d:%d]" % (base, base + n - 1)


def kernel_desc(name, vgpr, sgpr, accum):
    return """.section .rodata,"a"
.p2align 6
.amdhsa_kernel %s
  .amdhsa_next_free_vgpr %d
  .amdhsa_next_free_sgpr %d
  .amdhsa_accum_offset %d
  .amdhsa_group_segment_fixed_size 0
  .amdhsa_kernarg_size 104
  .amdhsa_user_sgpr_count 2
  .amdhsa_user_sgpr_kernarg_segment_ptr 1
  .amdhsa_system_sgpr_workgroup_id_x 1
.end_amdhsa_kernel
.text
""" % (name, vgpr, sgpr, accum)


import os
STAMP = int(os.environ.get("STAMP", "0"))
WS_STAMP = 120 << 20


def stamp(a, k, sbase=72, real=False):
    if not STAMP:
        return
    a.e("%s s[%d:%d]" % ("s_memrealtime" if real else "s_memtime", sbase + 2 * k, sbase + 2 * k + 1))


def stamp_dump(a, n, srd, sW, stmp, sbase=72, kidx=0, wave=0):
    if not STAMP:
        return
    lab = a.newlabel("STAMP_SKIP")
    a.e("s_waitcnt vmcnt(0) lgkmcnt(0)")
    a.e("s_cmp_lg_u32 s%d, %d" % (sW, wave))
    a.e("s_cbranch_scc1 %s" % lab)
    a.e("s_lshl_b32 s%d, s2, 7" % stmp)
    a.e("s_add_u32 s%d, s%d, 0x%x" % (stmp, stmp, WS_STAMP + kidx * 0x40000))
    a.e("v_mov_b32 v2, 0")
    a.e("s_getreg_b32 s%d, hwreg(HW_REG_XCC_ID)" % (sbase + 2 * n))
    a.e("s_getreg_b32 s%d, hwreg(HW_REG_HW_ID)" % (sbase + 2 * n + 1))
    for k in range(2 * n + 2):
        a.e("v_mov_b32 v3, s%d" % (sbase + k))
        a.e("buffer_store_dword v3, v2, s[%d:%d], s%d offen offset:%d" % (srd, srd + 3, stmp, 4 * k))
    a.e("s_waitcnt vmcnt(0)")
    a.label(lab)
```

```python
import struct, os
from asmlib import *
from layout import *


def f32hex(x):
    return "0x%08x" % struct.unpack("<I", struct.pack("<f", x))[0]


def gen_k1(a, name="k1_proj_kernel"):
    e = a.e
    SX1, SW1, SX2, SW2, SWS = 4, 8, 12, 16, 20
    sW, sWr, sWc = 24, 25, 26
    sXcd, sJ = 27, 28
    sRb1, sH1, sIsV = 29, 30, 31
    sRb2, sC32, sHW, sLdw2, sIsA, sSpare = 32, 33, 34, 35, 36, 37
    sWslot, sXslot, sXrd, sDelta = 38, 39, 40, 41
    sWk, sXk = 42, 43
    sWoff1, sWoff2, sXoff = 44, 45, 46
    sLoop = 47
    sT0, sT1, sT2, sT3 = 48, 49, 50, 51
    sP = 52
    sWstep2 = 68
    sOut = 69
    sCA = 70

    vLane = 1
    XF = [16, 48]
    WF = [32, 64]
    vXa = 80
    vWa1 = 84
    vWa2 = 88
    vOX1 = 92
    vOW1 = 100
    vOX2 = 104
    vOW2 = 112
    vSt = 115
    vStV = 116
    vT = 2
    ET = 120

    a.raw(".p2align 8")
    a.label(name)
    e("s_cmp_ge_u32 s2, 256")
    e("s_cbranch_scc1 K1_END")
    stamp(a, 0)
    stamp(a, 8, real=True)
    e("s_load_dwordx4 s[52:55], s[0:1], 0")
    e("s_load_dwordx4 s[56:59], s[0:1], 32")
    e("s_load_dwordx4 s[60:63], s[0:1], 48")
    e("s_load_dwordx2 s[64:65], s[0:1], 72")
    e("s_load_dwordx2 s[66:67], s[0:1], 96")
    e("v_and_b32 v%d, 63, v0" % vLane)
    e("v_lshrrev_b32 v2, 6, v0")
    e("s_and_b32 s%d, s2, 7" % sXcd)
    e("v_readfirstlane_b32 s%d, v2" % sW)
    e("s_lshr_b32 s%d, s2, 3" % sJ)
    e("s_and_b32 s%d, s%d, 7" % (sRb1, sJ))
    e("s_lshr_b32 s%d, s%d, 3" % (sT0, sJ))
    e("s_and_b32 s%d, s%d, 1" % (sT1, sT0))
    e("s_lshl_b32 s%d, s%d, 1" % (sH1, sXcd))
    e("s_add_u32 s%d, s%d, s%d" % (sH1, sH1, sT1))
    e("s_lshr_b32 s%d, s%d, 1" % (sIsV, sT0))
    e("s_and_b32 s%d, s%d, 1" % (sWr, sW))
    e("s_lshr_b32 s%d, s%d, 1" % (sWc, sW))
    e("s_mul_i32 s%d, s%d, 30" % (sT0, sXcd))
    e("s_add_u32 s%d, s%d, s%d" % (sT0, sT0, sJ))
    e("s_cmp_ge_u32 s%d, 30" % sJ)
    e("s_cselect_b32 s%d, 1, 0" % sSpare)
    e("s_cselect_b32 s%d, 0, s%d" % (sT0, sT0))
    e("s_and_b32 s%d, s%d, 7" % (sRb2, sT0))
    e("s_lshr_b32 s%d, s%d, 3" % (sT0, sT0))
    e("s_cmp_ge_u32 s%d, 22" % sT0)
    e("s_cselect_b32 s%d, 1, 0" % sIsA)
    e("s_cselect_b32 s%d, 28, 32" % sHW)
    e("s_movk_i32 s%d, 8192" % sLdw2)
    e("s_cselect_b32 s%d, 2688, s%d" % (sLdw2, sLdw2))
    e("s_cselect_b32 s%d, 22, 0" % sT1)
    e("s_sub_u32 s%d, s%d, s%d" % (sT0, sT0, sT1))
    e("s_mul_i32 s%d, s%d, 6" % (sC32, sT0))
    e("s_lshl_b32 s%d, s%d, 5" % (sWstep2, sLdw2))
    e("s_waitcnt lgkmcnt(0)")
    e("s_mov_b32 s%d, s56" % SX1)
    e("s_mov_b32 s%d, s57" % (SX1 + 1))
    e("s_mov_b32 s%d, %d" % (SX1 + 2, NB['ckv']))
    e("s_mov_b32 s%d, 0x20000" % (SX1 + 3))
    e("s_cmp_eq_u32 s%d, 0" % sIsV)
    e("s_cselect_b32 s%d, s60, s62" % SW1)
    e("s_cselect_b32 s%d, s61, s63" % (SW1 + 1))
    e("s_mov_b32 s%d, %d" % (SW1 + 2, NB['wuk']))
    e("s_mov_b32 s%d, 0x20000" % (SW1 + 3))
    e("s_mov_b32 s%d, s52" % SX2)
    e("s_mov_b32 s%d, s53" % (SX2 + 1))
    e("s_mov_b32 s%d, %d" % (SX2 + 2, NB['x']))
    e("s_mov_b32 s%d, 0x20000" % (SX2 + 3))
    e("s_cmp_eq_u32 s%d, 0" % sIsA)
    e("s_cselect_b32 s%d, s58, s54" % SW2)
    e("s_cselect_b32 s%d, s59, s55" % (SW2 + 1))
    e("s_mov_b32 s%d, %d" % (SW2 + 2, NB['wqkv']))
    e("s_cselect_b32 s%d, %d, s%d" % (SW2 + 2, NB['wq'], SW2 + 2))
    e("s_mov_b32 s%d, 0x20000" % (SW2 + 3))
    e("s_mov_b32 s%d, s66" % SWS)
    e("s_mov_b32 s%d, s67" % (SWS + 1))
    e("s_mov_b32 s%d, 0x%x" % (SWS + 2, WS_BYTES))
    e("s_mov_b32 s%d, 0x20000" % (SWS + 3))

    L = "v%d" % vLane
    e("v_lshrrev_b32 v2, 3, %s" % L)
    e("v_lshrrev_b32 v3, 4, %s" % L)
    e("v_and_b32 v4, 7, %s" % L)
    e("v_xor_b32 v5, v4, v3")
    e("v_xor_b32 v6, 4, v5")
    e("v_lshlrev_b32 v5, 4, v5")
    e("v_lshlrev_b32 v6, 4, v6")
    for (vO, sRb, ldx) in ((vOX1, sRb1, 2048), (vOX2, sRb2, 896)):
        e("s_lshl_b32 s%d, s%d, 8" % (sT0, sRb))
        e("s_lshl_b32 s%d, s%d, 6" % (sT1, sW))
        e("s_add_u32 s%d, s%d, s%d" % (sT0, sT0, sT1))
        e("v_add_u32 v7, s%d, v2" % sT0)
        e("s_movk_i32 s%d, %d" % (sT1, ldx))
        e("v_mul_lo_u32 v7, v7, s%d" % sT1)
        for p in range(8):
            cst = 8 * p * ldx - (p & 3) * 1024
            e("v_add_u32 v%d, %d, v7" % (vO + p, cst))
            e("v_add_u32 v%d, v%d, v%d" % (vO + p, vO + p, 5 if p % 2 == 0 else 6))
    e("v_lshrrev_b32 v2, 5, %s" % L)
    e("v_and_b32 v3, 31, %s" % L)
    e("s_lshl_b32 s%d, s%d, 3" % (sT0, sW))
    e("v_add_u32 v4, s%d, v2" % sT0)
    e("v_lshlrev_b32 v4, 13, v4")
    e("s_lshl_b32 s%d, s%d, 9" % (sT1, sH1))
    e("v_add_u32 v4, s%d, v4" % sT1)
    e("v_lshlrev_b32 v5, 2, v2")
    e("v_xor_b32 v5, v5, v3")
    e("v_xor_b32 v6, 8, v5")
    e("v_lshlrev_b32 v5, 4, v5")
    e("v_lshlrev_b32 v6, 4, v6")
    for q in range(4):
        cst = 2 * q * 8192 - q * 1024
        e("v_add_u32 v%d, %d, v4" % (vOW1 + q, cst))
        e("v_add_u32 v%d, v%d, v%d" % (vOW1 + q, vOW1 + q, 5 if q % 2 == 0 else 6))
    e("s_movk_i32 s%d, 2731" % sT1)
    for q in range(3):
        e("v_add_u32 v2, %d, %s" % (64 * q, L))
        e("v_mul_lo_u32 v3, v2, s%d" % sT1)
        e("v_lshrrev_b32 v3, 16, v3")
        e("v_mul_u32_u24 v4, 24, v3")
        e("v_sub_u32 v4, v2, v4")
        e("v_lshlrev_b32 v5, 1, v3")
        e("v_and_b32 v5, 4, v5")
        e("v_xor_b32 v4, v4, v5")
        e("v_lshrrev_b32 v5, 2, v4")
        e("v_add_u32 v5, s%d, v5" % sC32)
        e("v_mul_lo_u32 v5, v5, s%d" % sHW)
        e("v_and_b32 v4, 3, v4")
        e("v_lshlrev_b32 v4, 3, v4")
        e("v_add_u32 v5, v5, v4")
        e("v_lshlrev_b32 v5, 1, v5")
        e("v_add_u32 v3, s%d, v3" % sT0)
        e("v_mul_lo_u32 v3, v3, s%d" % sLdw2)
        e("v_add_u32 v3, v3, v5")
        e("v_subrev_u32 v%d, %d, v3" % (vOW2 + q, q * 1024))
    e("v_and_b32 v2, 31, %s" % L)
    e("s_lshl_b32 s%d, s%d, 7" % (sT0, sWr))
    e("v_add_u32 v2, s%d, v2" % sT0)
    e("v_lshlrev_b32 v2, 7, v2")
    e("v_add_u32 v2, 0x10000, v2")
    e("v_lshrrev_b32 v3, 5, %s" % L)
    e("v_bfe_u32 v4, %s, 1, 3" % L)
    e("v_xor_b32 v3, v3, v4")
    e("v_lshlrev_b32 v3, 4, v3")
    e("v_add_u32 v%d, v2, v3" % vXa)
    for s in range(1, 4):
        e("v_xor_b32 v%d, %d, v%d" % (vXa + s, s << 5, vXa))
    e("v_bfe_u32 v2, %s, 2, 2" % L)
    e("v_lshrrev_b32 v3, 5, %s" % L)
    e("v_lshl_add_u32 v3, v3, 3, v2")
    e("v_bfe_u32 v4, %s, 4, 1" % L)
    e("v_lshlrev_b32 v4, 5, v4")
    e("v_and_b32 v5, 3, %s" % L)
    e("v_lshl_add_u32 v4, v5, 3, v4")
    e("v_lshl_add_u32 v5, v3, 9, v4")
    e("s_lshl_b32 s%d, s%d, 8" % (sT0, sWc))
    e("v_add_u32 v5, s%d, v5" % sT0)
    for jj in range(4):
        e("v_xor_b32 v6, %d, v2" % jj)
        e("v_lshl_add_u32 v%d, v6, 6, v5" % (vWa1 + jj))
    e("v_mul_u32_u24 v5, 384, v3")
    e("v_add_u32 v5, v5, v4")
    e("v_bfe_u32 v6, %s, 3, 1" % L)
    e("s_mul_i32 s%d, s%d, 3" % (sT0, sWc))
    for jj in range(3):
        e("s_add_u32 s%d, s%d, %d" % (sT1, sT0, jj))
        e("v_xor_b32 v7, s%d, v6" % sT1)
        e("v_lshl_add_u32 v%d, v7, 6, v5" % (vWa2 + jj))
    e("v_lshlrev_b32 v%d, 4, %s" % (vSt, L))
    e("v_and_b32 v2, 31, %s" % L)
    e("v_lshlrev_b32 v2, 6, v2")
    e("v_lshrrev_b32 v3, 5, %s" % L)
    e("v_lshl_add_u32 v%d, v3, 4, v2" % vStV)
    e("s_lshl_b32 s%d, s%d, 12" % (sWoff1, sW))
    e("s_mul_i32 s%d, s%d, 3072" % (sWoff2, sW))
    e("s_lshl_b32 s%d, s%d, 13" % (sXoff, sW))
    e("s_mov_b32 s%d, 0" % sWslot)
    e("s_mov_b32 s%d, 0x10000" % sXslot)
    e("s_mov_b32 s%d, 0" % sXrd)
    e("s_mov_b32 s%d, 0" % sWk)
    e("s_mov_b32 s%d, 0" % sXk)

    NH1, NH2 = 32, 14
    NH = NH1 + NH2

    def G(b):
        return 1 if b < NH1 else 2

    def dmaW(b):
        if b >= NH:
            return []
        g = G(b)
        f = []
        if b == NH1:
            f.append("s_mov_b32 s%d, 0" % sWk)
        f.append("s_add_u32 m0, s%d, s%d" % (sWslot, sWoff1 if g == 1 else sWoff2))
        f.append("s_add_u32 s%d, s%d, 0x4000" % (sWslot, sWslot))
        for q in range(4 if g == 1 else 3):
            ins = "buffer_load_dwordx4 v%d, %s, s%d offen offset:%d lds" % (
                (vOW1 if g == 1 else vOW2) + q, sr(SW1 if g == 1 else SW2, 4), sWk, q * 1024)
            f.append((lambda ins=ins: a.vm(ins, ('W', b))))
        f.append("s_and_b32 s%d, s%d, 0xffff" % (sWslot, sWslot))
        if g == 1:
            f.append("s_add_u32 s%d, s%d, 0x40000" % (sWk, sWk))
        else:
            f.append("s_add_u32 s%d, s%d, s%d" % (sWk, sWk, sWstep2))
        return f

    def dmaX(T, half):
        if 2 * T >= NH:
            return []
        g = G(2 * T)
        f = []
        if 2 * T == NH1 and half == 0:
            f.append("s_mov_b32 s%d, 0" % sXk)
        if half == 0:
            f.append("s_add_u32 m0, s%d, s%d" % (sXslot, sXoff))
            f.append("s_nop 0")
        else:
            f.append("s_add_u32 s%d, s%d, s%d" % (sT0, sXslot, sXoff))
            f.append("s_add_u32 m0, s%d, 0x1000" % sT0)
            f.append("s_add_u32 s%d, s%d, 0x8000" % (sXslot, sXslot))
        for p in range(4):
            ins = "buffer_load_dwordx4 v%d, %s, s%d offen offset:%d lds" % (
                (vOX1 if g == 1 else vOX2) + 4 * half + p, sr(SX1 if g == 1 else SX2, 4), sXk, p * 1024)
            f.append((lambda ins=ins: a.vm(ins, ('X', T))))
        if half == 1:
            f.append("s_cmp_ge_u32 s%d, 0x28000" % sXslot)
            f.append("s_cselect_b32 s%d, 0x10000, s%d" % (sXslot, sXslot))
            f.append("s_add_u32 s%d, s%d, 128" % (sXk, sXk))
        return f

    def reads(b, ks, st):
        g = G(b)
        s = 2 * (b & 1) + ks
        nj = 4 if g == 1 else 3
        KS, U = (8192, 2048) if g == 1 else (6144, 1536)
        xr = ["ds_read_b128 %s, v%d offset:%d" % (vr(XF[st] + 4 * i, 4), vXa + s, 4096 * i) for i in range(4)]
        wr = []
        for jj in range(nj):
            for u in range(2):
                wr.append("ds_read_b64_tr_b16 %s, v%d offset:%d" % (
                    vr(WF[st] + 4 * jj + 2 * u, 2), (vWa1 if g == 1 else vWa2) + jj,
                    (b & 1) * 16384 + ks * KS + u * U))
        return [xr[0]] + wr + xr[1:]

    def mfmas(b, st, first, vtype):
        g = G(b)
        nj = 4 if g == 1 else 3
        out = []
        for i in range(4):
            for jj in range(nj):
                acc = ar((i * 4 + jj) * 16, 16)
                x = vr(XF[st] + 4 * i, 4)
                w = vr(WF[st] + 4 * jj, 4)
                A, B = (x, w) if (g == 1 and vtype) else (w, x)
                out.append("v_mfma_f32_32x32x16_bf16 %s, %s, %s, %s" % (acc, A, B, "0" if first else acc))
        return out

    def addr_update(b):
        g = G(b)
        f = []
        f.append("s_add_u32 s%d, s%d, 0x8000" % (sT1, sXrd))
        f.append("s_cmp_ge_u32 s%d, 0x18000" % sT1)
        f.append("s_cselect_b32 s%d, 0, s%d" % (sT1, sT1))
        f.append("s_sub_u32 s%d, s%d, s%d" % (sDelta, sT1, sXrd))
        f.append("s_mov_b32 s%d, s%d" % (sXrd, sT1))
        for s in range(4):
            f.append("v_add_u32 v%d, s%d, v%d" % (vXa + s, sDelta, vXa + s))
        for jj in range(4 if g == 1 else 3):
            r = (vWa1 if g == 1 else vWa2) + jj
            f.append("v_xor_b32 v%d, 0x8000, v%d" % (r, r))
        return f

    def half_iter(b, vtype, mid=None):
        T = b >> 1
        n = a.vm_need(lambda t: t == ('W', b) or t == ('X', T))
        e("s_waitcnt vmcnt(%d) lgkmcnt(0)" % n)
        e("s_barrier")
        m0 = mfmas(b - 1, 1, False, vtype) if b > 0 else []
        f0 = reads(b, 0, 0) + dmaW(b + 3)
        interleave(a, m0, f0)
        if mid:
            mid()
        e("s_waitcnt lgkmcnt(0)")
        m1 = mfmas(b, 0, b == 0 or b == NH1, vtype)
        f1 = reads(b, 1, 1) + dmaX(T + 2, b & 1) + (addr_update(b) if (b & 1) else [])
        interleave(a, m1, f1)
        return n

    def cvt_store(accbase, tb, soff, imm0, voff, imm_step, pre=None, tag='S'):
        for r in range(16):
            e("v_accvgpr_read_b32 v%d, a%d" % (tb + r, accbase + r))
        if pre:
            pre(tb)
        for r in range(8):
            e("v_cvt_pk_bf16_f32 v%d, v%d, v%d" % (tb + 16 + r, tb + 2 * r, tb + 2 * r + 1))
        for t in range(2):
            a.vm("buffer_store_dwordx4 %s, v%d, %s, s%d offen offset:%d %s" % (
                vr(tb + 16 + 4 * t, 4), voff, sr(SWS, 4), soff, imm0 + t * imm_step, os.environ.get("STFLAG", "")), tag)

    def epilogue1():
        e("s_lshl_b32 s%d, s%d, 6" % (sT0, sH1))
        e("s_lshl_b32 s%d, s%d, 3" % (sT1, sRb1))
        e("s_add_u32 s%d, s%d, s%d" % (sT0, sT0, sT1))
        e("s_lshl_b32 s%d, s%d, 2" % (sT1, sWr))
        e("s_add_u32 s%d, s%d, s%d" % (sT0, sT0, sT1))
        e("s_lshl_b32 s%d, s%d, 5" % (sT0, sT0))
        e("s_lshl_b32 s%d, s%d, 4" % (sT1, sIsV))
        e("s_add_u32 s%d, s%d, s%d" % (sT0, sT0, sT1))
        e("s_lshl_b32 s%d, s%d, 3" % (sT1, sWc))
        e("s_add_u32 s%d, s%d, s%d" % (sT0, sT0, sT1))
        e("s_lshl_b32 s%d, s%d, 10" % (sOut, sT0))
        e("s_nop 7")
        k = 0
        for i in range(4):
            for jj in range(4):
                if jj == 2:
                    e("s_add_u32 s%d, s%d, 4096" % (sOut, sOut))
                cvt_store((i * 4 + jj) * 16, ET + 24 * (k & 3), sOut, (jj & 1) * 2048, vSt, 1024)
                k += 1
            e("s_add_u32 s%d, s%d, %d" % (sOut, sOut, 32768 - 4096))

    def epilogue2():
        e("s_nop 7")
        e("s_nop 7")
        e("s_mov_b32 s%d, %s" % (sCA, f32hex(LOG2E * 28 ** -0.5)))
        e("s_lshl_b32 s%d, s%d, 3" % (sT3, sRb2))
        e("s_lshl_b32 s%d, s%d, 2" % (sT1, sWr))
        e("s_add_u32 s%d, s%d, s%d" % (sT3, sT3, sT1))
        k = 0
        for jj in range(3):
            lab_a = a.newlabel("K1_EA")
            lab_ak = a.newlabel("K1_EAK")
            lab_av = a.newlabel("K1_EAV")
            lab_n = a.newlabel("K1_EN")
            e("s_mul_i32 s%d, s%d, 3" % (sT0, sWc))
            e("s_add_u32 s%d, s%d, s%d" % (sT0, sT0, sC32))
            e("s_add_u32 s%d, s%d, %d" % (sT0, sT0, jj))
            e("s_cmp_lg_u32 s%d, 0" % sIsA)
            e("s_cbranch_scc1 %s" % lab_a)
            e("s_cmp_ge_u32 s%d, 128" % sT0)
            e("s_cbranch_scc1 %s" % lab_n)
            e("s_lshr_b32 s%d, s%d, 3" % (sT1, sT0))
            e("s_lshl_b32 s%d, s%d, 20" % (sT1, sT1))
            e("s_and_b32 s%d, s%d, 7" % (sT2, sT0))
            e("s_lshl_b32 s%d, s%d, 11" % (sT2, sT2))
            e("s_add_u32 s%d, s%d, s%d" % (sOut, sT1, sT2))
            e("s_lshl_b32 s%d, s%d, 14" % (sT1, sT3))
            e("s_add_u32 s%d, s%d, s%d" % (sOut, sOut, sT1))
            e("s_add_u32 s%d, s%d, 0x%x" % (sOut, sOut, WS_QB))
            for i in range(4):
                cvt_store((i * 4 + jj) * 16, ET + 24 * (k & 3), sOut, 0, vSt, 1024)
                k += 1
                e("s_add_u32 s%d, s%d, 16384" % (sOut, sOut))
            e("s_branch %s" % lab_n)
            a.label(lab_a)
            e("s_and_b32 s%d, s%d, 15" % (sT1, sT0))
            e("s_lshl_b32 s%d, s%d, 6" % (sT1, sT1))
            e("s_add_u32 s%d, s%d, s%d" % (sT1, sT1, sT3))
            e("s_lshr_b32 s%d, s%d, 4" % (sT2, sT0))
            e("s_cmp_eq_u32 s%d, 1" % sT2)
            e("s_cbranch_scc1 %s" % lab_ak)
            e("s_cmp_eq_u32 s%d, 2" % sT2)
            e("s_cbranch_scc1 %s" % lab_av)

            def padfix(val12):
                def f(tb):
                    e("s_mov_b32 exec_lo, 0")
                    e("v_mov_b32 v%d, %s" % (tb + 12, val12))
                    for r in (13, 14, 15):
                        e("v_mov_b32 v%d, 0" % (tb + r))
                    e("s_mov_b32 exec_lo, -1")
                return f

            def qfix(tb):
                for r in range(16):
                    e("v_mul_f32 v%d, s%d, v%d" % (tb + r, sCA, tb + r))
                padfix("0")(tb)
            e("s_lshl_b32 s%d, s%d, 11" % (sOut, sT1))
            e("s_add_u32 s%d, s%d, 0x%x" % (sOut, sOut, WS_QA))
            for i in range(4):
                cvt_store((i * 4 + jj) * 16, ET + 24 * (k & 3), sOut, 0, vSt, 1024, pre=qfix)
                k += 1
                e("s_add_u32 s%d, s%d, 2048" % (sOut, sOut))
            e("s_branch %s" % lab_n)
            a.label(lab_ak)
            e("s_lshl_b32 s%d, s%d, 12" % (sOut, sT1))
            e("s_add_u32 s%d, s%d, 0x%x" % (sOut, sOut, WS_KVA))
            for i in range(4):
                cvt_store((i * 4 + jj) * 16, ET + 24 * (k & 3), sOut, 0, vSt, 1024, pre=padfix("0"))
                k += 1
                e("s_add_u32 s%d, s%d, 4096" % (sOut, sOut))
            e("s_branch %s" % lab_n)
            a.label(lab_av)
            e("s_lshl_b32 s%d, s%d, 12" % (sOut, sT1))
            e("s_add_u32 s%d, s%d, 0x%x" % (sOut, sOut, WS_KVA + 2048))
            for i in range(4):
                cvt_store((i * 4 + jj) * 16, ET + 24 * (k & 3), sOut, 0, vStV, 32, pre=padfix("1.0"))
                k += 1
                e("s_add_u32 s%d, s%d, 4096" % (sOut, sOut))
            a.label(lab_n)

    for f in dmaX(0, 0) + dmaX(0, 1) + dmaW(0) + dmaW(1) + dmaX(1, 0) + dmaX(1, 1) + dmaW(2):
        emit1(a, f)
    e("s_cmp_lg_u32 s%d, 0" % sIsV)
    e("s_cbranch_scc1 K1_VTYPE")
    vq_save = list(a.vq)
    for vtype in (0, 1):
        a.vq = list(vq_save)
        if vtype:
            a.label("K1_VTYPE")
        stamp(a, 1)
        half_iter(0, vtype)
        stamp(a, 2)
        half_iter(1, vtype)
        half_iter(2, vtype)
        half_iter(3, vtype)
        e("s_mov_b32 s%d, 12" % sLoop)
        lab = "K1_LOOP%d" % vtype
        a.label(lab)
        n1 = half_iter(4, vtype)
        n2 = half_iter(5, vtype)
        e("s_sub_u32 s%d, s%d, 1" % (sLoop, sLoop))
        e("s_cmp_lg_u32 s%d, 0" % sLoop)
        e("s_cbranch_scc1 %s" % lab)
        save = a.lines
        for b in range(6, 28):
            a.lines = []
            n = half_iter(b, vtype)
            assert n == (n1 if b % 2 == 0 else n2), (b, n, n1, n2)
        a.lines = save
        for b in range(28, 32):
            half_iter(b, vtype)

        def mid():
            stamp(a, 3)
            if not os.environ.get("NOEPI1"):
                epilogue1()
            stamp(a, 4)
            e("s_cmp_lg_u32 s%d, 0" % sSpare)
            e("s_cbranch_scc1 K1_GATE")
            if vtype == 0:
                e("s_branch K1_G2")
            else:
                a.label("K1_G2")
        if vtype == 0:
            save = a.lines
            a.lines = []
            half_iter(32, vtype, mid)
            idx = a.lines.index("    s_branch K1_G2")
            save.extend(a.lines[:idx + 1])
            a.lines = save
        else:
            half_iter(32, vtype, mid)
    for b in range(33, NH):
        if os.environ.get("STAMPG2") and b in (34, 36, 38, 40):
            stamp(a, 1 + (b - 34) // 2)
        half_iter(b, 0)
    e("s_waitcnt lgkmcnt(0)")
    for m in mfmas(NH - 1, 1, False, 0):
        e(m)
    stamp(a, 5)
    epilogue2()
    stamp(a, 6)
    if STAMP:
        e("s_waitcnt vmcnt(0)")
    stamp(a, 7)
    stamp(a, 9, real=True)
    stamp_dump(a, 10, SWS, sW, sT0)
    e("s_endpgm")

    a.label("K1_GATE")
    e("s_waitcnt vmcnt(0) lgkmcnt(0)")
    e("s_mov_b32 s4, s64")
    e("s_mov_b32 s5, s65")
    e("s_mov_b32 s6, %d" % NB['gw'])
    e("s_mov_b32 s7, 0x20000")
    e("s_sub_u32 s%d, s%d, 30" % (sT0, sJ))
    e("s_lshl_b32 s%d, s%d, 1" % (sT1, sXcd))
    e("s_add_u32 s%d, s%d, s%d" % (sT0, sT0, sT1))
    e("s_lshl_b32 s%d, s%d, 7" % (sT0, sT0))
    e("s_lshl_b32 s%d, s%d, 5" % (sT1, sW))
    e("s_add_u32 s%d, s%d, s%d" % (sT0, sT0, sT1))
    e("v_and_b32 v2, 31, %s" % L)
    e("v_add_u32 v2, s%d, v2" % sT0)
    e("v_lshrrev_b32 v3, 5, %s" % L)
    e("v_mul_u32_u24 v3, 448, v3")
    e("v_mul_u32_u24 v4, 896, v2")
    e("v_add_u32 v4, v4, v3")
    e("v_mov_b32 v5, 0")
    for c0 in range(0, 28, 7):
        for c in range(7):
            e("buffer_load_dwordx4 %s, v4, %s, 0 offen offset:%d" % (vr(16 + 4 * c, 4), sr(SX2, 4), (c0 + c) * 16))
            e("buffer_load_dwordx4 %s, v3, s[4:7], 0 offen offset:%d" % (vr(48 + 4 * c, 4), (c0 + c) * 16))
        e("s_waitcnt vmcnt(0)")
        for r in range(28):
            e("v_dot2_f32_bf16 v5, v%d, v%d, v5" % (16 + r, 48 + r))
    e("s_nop 3")
    e("v_mov_b32 v6, v5")
    e("s_nop 1")
    e("v_permlane32_swap_b32 v5, v6")
    e("s_nop 1")
    e("v_add_f32 v5, v5, v6")
    e("v_cvt_pk_bf16_f32 v5, v5, v5")
    e("v_lshlrev_b32 v5, 16, v5")
    e("v_mul_f32 v5, %s, v5" % f32hex(-LOG2E))
    e("v_exp_f32 v5, v5")
    e("s_nop 0")
    e("v_add_f32 v5, 1.0, v5")
    e("v_rcp_f32 v5, v5")
    e("s_nop 0")
    e("v_cvt_pk_bf16_f32 v5, v5, v5")
    e("v_lshlrev_b32 v5, 16, v5")
    e("v_sub_f32 v6, 1.0, v5")
    e("v_cvt_pk_bf16_f32 v6, v6, v6")
    e("v_lshlrev_b32 v6, 16, v6")
    e("v_lshlrev_b32 v2, 2, v2")
    e("s_mov_b32 s%d, 0x%x" % (sT0, WS_G))
    e("s_mov_b32 s%d, 0x%x" % (sT1, WS_G + 8192))
    e("s_mov_b32 exec_hi, 0")
    e("buffer_store_dword v5, v2, %s, s%d offen" % (sr(SWS, 4), sT0))
    e("buffer_store_dword v6, v2, %s, s%d offen" % (sr(SWS, 4), sT1))
    e("s_mov_b32 exec_hi, -1")
    e("s_sub_u32 s%d, s%d, 30" % (sT0, sJ))
    e("s_lshl_b32 s%d, s%d, 1" % (sT1, sXcd))
    e("s_add_u32 s%d, s%d, s%d" % (sT0, sT0, sT1))
    e("s_lshl_b32 s%d, s%d, 12" % (sT0, sT0))
    e("s_add_u32 s%d, s%d, 0x%x" % (sT0, sT0, WS_FLAG))
    e("v_lshlrev_b32 v2, 4, v0")
    for r in range(4):
        e("v_mov_b32 v%d, 0" % (8 + r))
    e("buffer_store_dwordx4 v[8:11], v2, %s, s%d offen" % (sr(SWS, 4), sT0))
    a.label("K1_END")
    e("s_endpgm")
    return kernel_desc(name, 512, 96, 256)
```

```python
import struct, os
from asmlib import *
from layout import *

LAUNCH = "; @launch kernel=k2_attnb_kernel grid=(256,1,1) block=(256,1,1) lds=131072"
SPLIT = int(os.environ.get("SPLIT", "36"))
THR = 8.0
PART_WAVE = 33 * 1024


def f32hex(x):
    return "0x%08x" % struct.unpack("<I", struct.pack("<f", x))[0]


def gen_k2(a, name="k2_attnb_kernel"):
    e = a.e
    SWS = 4
    sW, sH, sI, sRole = 8, 9, 10, 11
    sQb, sKb0, sKb1, sMode = 12, 13, 14, 15
    sJw, sJ, sSeg = 16, 17, 18
    sKV = 19
    sN1, sTT = 20, 21
    sKb0a = 22
    sT = 23
    sC, sThrAdd = 24, 25
    sWoff = 26
    sT0, sT1, sT2, sT3 = 27, 28, 29, 30
    sPart, sFlag = 31, 32
    sEnd = 33
    sSpin = 34

    O = 0
    Q = 128
    S = [192, 208]
    FR = 224
    NFR = 5
    vKa, vVa, vMc, vL, vThr, vTm, vT1, vT2, vDma, vQm, vL16, vM = 244, 245, 246, 247, 248, 249, 250, 251, 252, 253, 254, 255

    C = LOG2E / 16.0

    a.raw(".p2align 8")
    a.label(name)
    e("s_cmp_ge_u32 s2, 256")
    e("s_cbranch_scc1 K2_END")
    stamp(a, 0)
    stamp(a, 8, real=True)
    e("s_load_dwordx2 s[36:37], s[0:1], 96")
    e("v_lshrrev_b32 v1, 6, v0")
    e("v_and_b32 v2, 63, v0")
    e("v_readfirstlane_b32 s%d, v1" % sW)
    e("v_lshlrev_b32 v%d, 4, v2" % vL16)
    e("v_lshlrev_b32 v%d, 4, v2" % vDma)
    e("v_and_b32 v3, 31, v2")
    e("v_lshrrev_b32 v4, 5, v2")
    e("v_lshlrev_b32 v4, 2, v4")
    e("v_sub_u32 v%d, v3, v4" % vQm)
    e("s_lshr_b32 s%d, s2, 7" % sRole)
    e("s_and_b32 s%d, s2, 7" % sT0)
    e("s_lshl_b32 s%d, s%d, 1" % (sH, sT0))
    e("s_bfe_u32 s%d, s2, 0x10003" % sT0)
    e("s_add_u32 s%d, s%d, s%d" % (sH, sH, sT0))
    e("s_bfe_u32 s%d, s2, 0x30004" % sI)
    e("s_lshl_b32 s%d, s%d, 12" % (sWoff, sW))
    e("v_add_u32 v%d, s%d, v%d" % (vDma, sWoff, vDma))
    e("s_lshl_b32 s%d, s%d, 21" % (sKV, sH))
    e("s_mov_b32 s%d, %s" % (sC, f32hex(C)))
    e("s_mov_b32 s%d, %s" % (sThrAdd, f32hex(THR / C)))
    e("s_lshl_b32 s%d, s%d, 3" % (sT0, sH))
    e("s_add_u32 s%d, s%d, s%d" % (sT0, sT0, sI))
    e("s_lshl_b32 s%d, s%d, 2" % (sT0, sT0))
    e("s_add_u32 s%d, s%d, s%d" % (sT0, sT0, sW))
    e("s_mul_i32 s%d, s%d, %d" % (sPart, sT0, PART_WAVE))
    e("s_add_u32 s%d, s%d, 0x%x" % (sPart, sPart, WS_PART))
    e("s_lshl_b32 s%d, s%d, 7" % (sFlag, sT0))
    e("s_add_u32 s%d, s%d, 0x%x" % (sFlag, sFlag, WS_FLAG))
    e("s_sub_u32 s%d, 15, s%d" % (sQb, sI))
    e("s_lshl_b32 s%d, s%d, 2" % (sT0, sQb))
    e("s_add_u32 s%d, s%d, 4" % (sT0, sT0))
    e("s_cmp_eq_u32 s%d, 0" % sRole)
    e("s_cbranch_scc1 K2_PROD")
    e("s_mov_b32 s%d, 0" % sKb0)
    e("s_min_u32 s%d, s%d, %d" % (sKb1, sT0, SPLIT))
    e("s_cmp_gt_u32 s%d, %d" % (sT0, SPLIT))
    e("s_cselect_b32 s%d, 2, 0" % sMode)
    e("s_mov_b32 s%d, s%d" % (sN1, sKb1))
    e("s_mov_b32 s%d, s%d" % (sTT, sKb1))
    e("s_mov_b32 s%d, 1" % sSeg)
    e("s_branch K2_SETUP_DONE")
    a.label("K2_PROD")
    e("s_lshl_b32 s%d, s%d, 2" % (sT1, sI))
    e("s_add_u32 s%d, s%d, 4" % (sT1, sT1))
    e("s_cmp_gt_u32 s%d, %d" % (sT0, SPLIT))
    e("s_cbranch_scc1 K2_PROD2")
    e("s_mov_b32 s%d, s%d" % (sQb, sI))
    e("s_mov_b32 s%d, 0" % sKb0)
    e("s_mov_b32 s%d, s%d" % (sKb1, sT1))
    e("s_mov_b32 s%d, 0" % sMode)
    e("s_mov_b32 s%d, s%d" % (sN1, sT1))
    e("s_mov_b32 s%d, s%d" % (sTT, sT1))
    e("s_mov_b32 s%d, 1" % sSeg)
    e("s_branch K2_SETUP_DONE")
    a.label("K2_PROD2")
    e("s_mov_b32 s%d, %d" % (sKb0, SPLIT))
    e("s_mov_b32 s%d, s%d" % (sKb1, sT0))
    e("s_mov_b32 s%d, 1" % sMode)
    e("s_sub_u32 s%d, s%d, %d" % (sN1, sT0, SPLIT))
    e("s_add_u32 s%d, s%d, s%d" % (sTT, sN1, sT1))
    e("s_mov_b32 s%d, 0" % sSeg)
    a.label("K2_SETUP_DONE")
    e("s_mov_b32 s%d, s%d" % (sKb0a, sKb0))
    e("s_waitcnt lgkmcnt(0)")
    e("s_mov_b32 s%d, s36" % SWS)
    e("s_mov_b32 s%d, s37" % (SWS + 1))
    e("s_mov_b32 s%d, 0x%x" % (SWS + 2, WS_BYTES))
    e("s_mov_b32 s%d, 0x20000" % (SWS + 3))
    WSR = sr(SWS, 4)

    def dma(dt, isV):
        f = []
        f.append("s_add_u32 s%d, s%d, %d" % (sT0, sT, dt))
        f.append("s_add_u32 s%d, s%d, s%d" % (sT1, sT0, sKb0a))
        f.append("s_sub_u32 s%d, s%d, s%d" % (sT2, sT0, sN1))
        f.append("s_cmp_lt_u32 s%d, s%d" % (sT0, sN1))
        f.append("s_cselect_b32 s%d, s%d, s%d" % (sT1, sT1, sT2))
        f.append("s_lshl_b32 s%d, s%d, 15" % (sT1, sT1))
        f.append("s_add_u32 s%d, s%d, s%d" % (sT1, sT1, sKV))
        if isV:
            f.append("s_add_u32 s%d, s%d, 0x4000" % (sT1, sT1))
        f.append("s_cmp_lt_u32 s%d, s%d" % (sT0, sTT))
        f.append("s_cselect_b32 s%d, s%d, 0x7ff00000" % (sT1, sT1))
        f.append("s_and_b32 s%d, s%d, 3" % (sT0, sT0))
        f.append("s_lshl_b32 s%d, s%d, 14" % (sT0, sT0))
        f.append("s_add_u32 s%d, s%d, s%d" % (sT0, sT0, sWoff))
        f.append("s_add_u32 m0, s%d, 0x%x" % (sT0, 0x10000 if isV else 0))
        f.append("s_nop 0")
        for p in range(4):
            f.append("buffer_load_dwordx4 v%d, %s, s%d offen offset:%d lds" % (vDma, WSR, sT1, p * 1024))
        return f

    e("s_mov_b32 s%d, 0" % sT)
    for f in dma(0, 0) + dma(1, 0) + dma(0, 1) + dma(2, 0) + dma(1, 1) + dma(3, 0) + dma(2, 1):
        e(f)

    a.label("K2_SEG")
    e("s_lshl_b32 s%d, s%d, 6" % (sT0, sH))
    e("s_lshl_b32 s%d, s%d, 2" % (sT1, sQb))
    e("s_add_u32 s%d, s%d, s%d" % (sJw, sT1, sW))
    e("s_add_u32 s%d, s%d, s%d" % (sT0, sT0, sJw))
    e("s_lshl_b32 s%d, s%d, 14" % (sT0, sT0))
    e("s_add_u32 s%d, s%d, 0x%x" % (sT0, sT0, WS_QB))
    for s in range(16):
        if s and s % 4 == 0:
            e("s_add_u32 s%d, s%d, 4096" % (sT0, sT0))
        e("buffer_load_dwordx4 %s, v%d, %s, s%d offen offset:%d" % (vr(Q + 4 * s, 4), vL16, WSR, sT0, (s % 4) * 1024))
    for r in range(128):
        e("v_mov_b32 v%d, 0" % (O + r))
    e("v_mov_b32 v%d, 0" % vL)
    e("v_mov_b32 v%d, %s" % (vM, f32hex(-1e30)))
    e("v_mov_b32 v%d, %s" % (vMc, f32hex(-1e30 * C)))
    e("v_mov_b32 v%d, %s" % (vThr, f32hex(-1e30)))
    e("s_sub_u32 s%d, s%d, 1" % (sT0, sKb1))
    e("s_min_u32 s%d, s%d, s%d" % (sEnd, sT0, sJw))
    e("s_mov_b32 s%d, s%d" % (sJ, sKb0))
    e("s_waitcnt vmcnt(0)")
    e("s_barrier")
    stamp(a, 1)

    def set_addr(vreg, dt, base):
        return ["s_add_u32 s%d, s%d, %d" % (sT3, sT, dt),
                "s_and_b32 s%d, s%d, 3" % (sT3, sT3),
                "s_lshl_b32 s%d, s%d, 14" % (sT3, sT3),
                "s_add_u32 s%d, s%d, 0x%x" % (sT3, sT3, base),
                "v_add_u32 v%d, s%d, v%d" % (vreg, sT3, vL16)]

    def qk_mfma(s, sb, fr):
        return "v_mfma_f32_32x32x16_bf16 %s, %s, %s, %s" % (
            vr(S[sb], 16), vr(FR + 4 * fr, 4), vr(Q + 4 * s, 4), "0" if s == 0 else vr(S[sb], 16))

    def pv_mfma(n, sb, fr):
        db, t = n >> 1, n & 1
        return "v_mfma_f32_32x32x16_bf16 %s, %s, %s, %s" % (
            vr(O + 16 * db, 16), vr(FR + 4 * fr, 4), vr(S[sb] + 4 * t, 4), vr(O + 16 * db, 16))

    def rd(fr, vaddr, chunk):
        return "ds_read_b128 %s, v%d offset:%d" % (vr(FR + 4 * fr, 4), vaddr, chunk * 1024)

    def softmax_ops(sb):
        b = S[sb]
        ops = []
        for i in range(16 + 3):
            if i < 16:
                ops.append("v_fma_f32 v%d, v%d, s%d, -v%d" % (b + i, b + i, sC, vMc))
            if 0 <= i - 1 < 16:
                ops.append("v_exp_f32 v%d, v%d" % (b + i - 1, b + i - 1))
            k = i - 3
            if 0 <= k < 16:
                ops.append("v_add_f32 v%d, v%d, v%d" % (vL, vL, b + k))
                if k & 1:
                    ops.append("v_cvt_pk_bf16_f32 v%d, v%d, v%d" % (b + (k >> 1), b + k - 1, b + k))
        return ops

    def max_ops(sb):
        b = S[sb]
        ops = ["v_max3_f32 v%d, v%d, v%d, v%d" % (vTm, b, b + 1, b + 2)]
        for k in range(3, 15, 2):
            ops.append("v_max3_f32 v%d, v%d, v%d, v%d" % (vTm, vTm, b + k, b + k + 1))
        ops.append("v_max_f32 v%d, v%d, v%d" % (vTm, vTm, b + 15))
        ops.append("v_cmp_gt_f32 vcc, v%d, v%d" % (vTm, vThr))
        return ops

    def slow_path(sb, lab, back, blk_reg_expr):
        a.label(lab)
        e("s_nop 7")
        e("s_nop 7")
        b = S[sb]
        nomask = a.newlabel("K2_NOMASK")
        blk_reg_expr()
        e("s_cmp_lg_u32 s%d, s%d" % (sT0, sJw))
        e("s_cbranch_scc1 %s" % nomask)
        e("v_mov_b32 v%d, %s" % (vT1, f32hex(-1e30)))
        for i in range(16):
            kk = 8 * (i >> 2) + (i & 3)
            e("v_cmp_gt_i32 vcc, %d, v%d" % (kk, vQm))
            e("s_nop 1")
            e("v_cndmask_b32 v%d, v%d, v%d, vcc" % (b + i, b + i, vT1))
        a.label(nomask)
        for op in max_ops(sb)[:-1]:
            e(op)
        e("v_mov_b32 v%d, v%d" % (vT1, vTm))
        e("s_nop 1")
        e("v_permlane32_swap_b32 v%d, v%d" % (vTm, vT1))
        e("s_nop 1")
        e("v_max3_f32 v%d, v%d, v%d, v%d" % (vM, vM, vTm, vT1))
        e("v_mul_f32 v%d, s%d, v%d" % (vT1, sC, vM))
        e("v_sub_f32 v%d, v%d, v%d" % (vT2, vMc, vT1))
        e("v_exp_f32 v%d, v%d" % (vT2, vT2))
        e("v_mov_b32 v%d, v%d" % (vMc, vT1))
        e("v_add_f32 v%d, s%d, v%d" % (vThr, sThrAdd, vM))
        e("v_mul_f32 v%d, v%d, v%d" % (vL, vL, vT2))
        for r in range(128):
            e("v_mul_f32 v%d, v%d, v%d" % (O + r, O + r, vT2))
        e("s_nop 1")
        e("s_branch %s" % back)

    slow = []

    e("s_cmp_lt_i32 s%d, s%d" % (sEnd, sKb0))
    e("s_cbranch_scc1 K2_STEP0")
    for f in set_addr(vKa, 0, 0):
        e(f)
    for s in range(NFR - 1):
        e(rd(s, vKa, s))
    for s in range(16):
        e("s_waitcnt lgkmcnt(%d)" % min(NFR - 2, 15 - s))
        e(qk_mfma(s, 0, s % NFR))
        if s + NFR - 1 < 16:
            e(rd((s + NFR - 1) % NFR, vKa, s + NFR - 1))
    e("s_branch K2_SLOW_PRE")
    a.label("K2_BACK_PRE")
    slow.append((0, "K2_SLOW_PRE", "K2_BACK_PRE", lambda: e("s_mov_b32 s%d, s%d" % (sT0, sJ))))

    for par in (0, 1):
        cur, nxt = par, 1 - par
        a.label("K2_STEP%d" % par)
        e("s_cmp_ge_u32 s%d, s%d" % (sJ, sKb1))
        e("s_cbranch_scc1 K2_SEG_END")
        e("s_waitcnt vmcnt(16)")
        e("s_barrier")
        e("s_cmp_gt_i32 s%d, s%d" % (sJ, sEnd))
        e("s_cbranch_scc1 K2_IDLE%d" % par)
        e("s_cmp_eq_u32 s%d, s%d" % (sJ, sEnd))
        e("s_cbranch_scc1 K2_LAST%d" % par)
        for f in set_addr(vKa, 1, 0) + set_addr(vVa, 0, 0x10000):
            e(f)
        def rdn(n):
            return rd(n % NFR, vKa, n) if n < 16 else rd(n % NFR, vVa, n - 16)
        for n in range(NFR - 1):
            e(rdn(n))
        fx = softmax_ops(cur)
        dk = dma(4, 0)
        dv = dma(3, 1)
        fy = max_ops(nxt)
        def share(lst, g, ng):
            return lst[(g * len(lst)) // ng:((g + 1) * len(lst)) // ng]
        for n in range(32):
            rem = 31 - n
            e("s_waitcnt lgkmcnt(%d)" % min(NFR - 2, rem))
            if n < 16:
                e(qk_mfma(n, nxt, n % NFR))
            else:
                e(pv_mfma(n - 16, cur, n % NFR))
            if n + NFR - 1 < 32:
                e(rdn(n + NFR - 1))
            if n < 15:
                for f in share(fx, n, 15):
                    e(f)
            elif n == 15:
                e("s_nop 0")
            elif 16 <= n < 22:
                for f in share(dk, n - 16, 6):
                    e(f)
            elif 22 <= n < 28:
                for f in share(dv, n - 22, 6):
                    e(f)
            if 26 <= n < 31:
                for f in share(fy, n - 26, 5):
                    e(f)
        e("s_add_u32 s%d, s%d, 1" % (sJ, sJ))
        e("s_add_u32 s%d, s%d, 1" % (sT, sT))
        e("s_cbranch_vccnz K2_SLOW%d" % par)
        e("s_cmp_eq_u32 s%d, s%d" % (sJ, sJw))
        e("s_cbranch_scc1 K2_SLOW%d" % par)
        a.label("K2_BACK%d" % par)
        slow.append((nxt, "K2_SLOW%d" % par, "K2_BACK%d" % par, lambda: e("s_mov_b32 s%d, s%d" % (sT0, sJ))))
        if par == 1:
            e("s_branch K2_STEP0")
    for par in (0, 1):
        cur = par
        a.label("K2_LAST%d" % par)
        for f in set_addr(vVa, 0, 0x10000):
            e(f)
        for n in range(NFR - 1):
            e(rd(n, vVa, n))
        for f in dma(4, 0) + dma(3, 1):
            e(f)
        for f in softmax_ops(cur):
            e(f)
        e("s_nop 1")
        for n in range(16):
            e("s_waitcnt lgkmcnt(%d)" % min(NFR - 2, 15 - n))
            e(pv_mfma(n, cur, n % NFR))
            if n + NFR - 1 < 16:
                e(rd((n + NFR - 1) % NFR, vVa, n + NFR - 1))
        e("s_add_u32 s%d, s%d, 1" % (sJ, sJ))
        e("s_add_u32 s%d, s%d, 1" % (sT, sT))
        e("s_branch K2_STEP%d" % (1 - par))
        a.label("K2_IDLE%d" % par)
        for f in dma(4, 0) + dma(3, 1):
            e(f)
        e("s_add_u32 s%d, s%d, 1" % (sJ, sJ))
        e("s_add_u32 s%d, s%d, 1" % (sT, sT))
        e("s_branch K2_STEP%d" % (1 - par))
    for sp in slow:
        slow_path(*sp)

    a.label("K2_SEG_END")
    stamp(a, 2)
    e("s_nop 7")
    e("s_nop 7")
    e("v_mov_b32 v%d, v%d" % (vT1, vL))
    e("s_nop 1")
    e("v_permlane32_swap_b32 v%d, v%d" % (vL, vT1))
    e("s_nop 1")
    e("v_add_f32 v%d, v%d, v%d" % (vL, vL, vT1))
    e("s_cmp_eq_u32 s%d, 1" % sMode)
    e("s_cbranch_scc1 K2_PUBLISH")
    e("v_lshrrev_b32 v%d, 4, v%d" % (vT1, vL16))
    e("v_and_b32 v%d, 31, v%d" % (vT1, vT1))
    e("v_lshlrev_b32 v%d, 2, v%d" % (vT1, vT1))
    e("s_lshl_b32 s%d, s%d, 7" % (sT0, sJw))
    e("s_add_u32 s%d, s%d, 0x%x" % (sT0, sT0, WS_G + 8192))
    e("buffer_load_dword v%d, v%d, %s, s%d offen" % (vThr, vT1, WSR, sT0))
    e("s_mul_i32 s%d, s%d, 288" % (sT3, sJw))
    e("s_lshl_b32 s%d, s%d, 4" % (sT1, sH))
    e("s_add_u32 s%d, s%d, s%d" % (sT3, sT3, sT1))
    e("s_lshl_b32 s%d, s%d, 10" % (sT3, sT3))
    e("s_add_u32 s%d, s%d, 0x%x" % (sT3, sT3, WS_CTX))
    e("s_cmp_eq_u32 s%d, 2" % sMode)
    e("s_cbranch_scc1 K2_COMBINE")
    e("v_rcp_f32 v%d, v%d" % (vT2, vL))
    e("s_waitcnt vmcnt(0)")
    e("v_mul_f32 v%d, v%d, v%d" % (vT2, vT2, vThr))

    def store_ctx(db):
        tb = S[0] + 8 * (db & 3)
        for r in range(8):
            e("v_cvt_pk_bf16_f32 v%d, v%d, v%d" % (tb + r, O + 16 * db + 2 * r, O + 16 * db + 2 * r + 1))
        for t in range(2):
            e("buffer_store_dwordx4 %s, v%d, %s, s%d offen offset:%d" % (
                vr(tb + 4 * t, 4), vL16, WSR, sT3, ((db & 1) * 2 + t) * 1024))
        if db & 1:
            e("s_add_u32 s%d, s%d, 4096" % (sT3, sT3))

    for db in range(8):
        for r in range(16):
            e("v_mul_f32 v%d, v%d, v%d" % (O + 16 * db + r, O + 16 * db + r, vT2))
        store_ctx(db)
    a.label("K2_NEXT")
    stamp(a, 3)
    e("s_cmp_lg_u32 s%d, 0" % sSeg)
    e("s_cbranch_scc1 K2_DONE")
    e("s_mov_b32 s%d, 1" % sSeg)
    e("s_mov_b32 s%d, s%d" % (sQb, sI))
    e("s_mov_b32 s%d, 0" % sKb0)
    e("s_lshl_b32 s%d, s%d, 2" % (sKb1, sI))
    e("s_add_u32 s%d, s%d, 4" % (sKb1, sKb1))
    e("s_mov_b32 s%d, 0" % sMode)
    e("s_branch K2_SEG")

    a.label("K2_PUBLISH")
    e("s_mov_b32 s%d, s%d" % (sT0, sPart))
    for c in range(32):
        if c and c % 4 == 0:
            e("s_add_u32 s%d, s%d, 4096" % (sT0, sT0))
        e("buffer_store_dwordx4 %s, v%d, %s, s%d offen offset:%d sc1" % (vr(O + 4 * c, 4), vL16, WSR, sT0, (c % 4) * 1024))
    e("s_add_u32 s%d, s%d, 4096" % (sT0, sT0))
    e("v_mov_b32 v%d, v%d" % (S[0], vMc))
    e("v_mov_b32 v%d, v%d" % (S[0] + 1, vL))
    e("v_mov_b32 v%d, 0" % (S[0] + 2))
    e("v_mov_b32 v%d, 0" % (S[0] + 3))
    e("buffer_store_dwordx4 %s, v%d, %s, s%d offen sc1" % (vr(S[0], 4), vL16, WSR, sT0))
    e("s_waitcnt vmcnt(0)")
    e("v_mov_b32 v%d, 1" % vT1)
    e("v_mov_b32 v%d, 0" % vT2)
    e("s_mov_b64 exec, 1")
    e("buffer_store_dword v%d, v%d, %s, s%d offen sc1" % (vT1, vT2, WSR, sFlag))
    e("s_mov_b64 exec, -1")
    e("s_branch K2_NEXT")

    a.label("K2_COMBINE")
    e("v_mov_b32 v%d, 0" % vT2)
    e("s_mov_b32 s%d, 0x40000" % sSpin)
    a.label("K2_POLL")
    e("buffer_load_dword v%d, v%d, %s, s%d offen sc1" % (vT1, vT2, WSR, sFlag))
    e("s_waitcnt vmcnt(0)")
    e("v_readfirstlane_b32 s%d, v%d" % (sT0, vT1))
    e("s_cmp_eq_u32 s%d, 1" % sT0)
    e("s_cbranch_scc1 K2_POLL_OK")
    e("s_sleep 2")
    e("s_sub_u32 s%d, s%d, 1" % (sSpin, sSpin))
    e("s_cmp_lg_u32 s%d, 0" % sSpin)
    e("s_cbranch_scc1 K2_POLL")
    a.label("K2_POLL_OK")
    e("s_add_u32 s%d, s%d, 32768" % (sT0, sPart))
    e("buffer_load_dwordx4 %s, v%d, %s, s%d offen sc1" % (vr(FR, 4), vL16, WSR, sT0))
    e("s_mov_b32 s%d, s%d" % (sT0, sPart))

    def load_half(hf):
        for c in range(16):
            if c and c % 4 == 0:
                e("s_add_u32 s%d, s%d, 4096" % (sT0, sT0))
            e("buffer_load_dwordx4 %s, v%d, %s, s%d offen offset:%d sc1" % (vr(Q + 4 * c, 4), vL16, WSR, sT0, (c % 4) * 1024))
        e("s_add_u32 s%d, s%d, 4096" % (sT0, sT0))
    load_half(0)
    e("s_waitcnt vmcnt(16)")
    e("v_max_f32 v%d, v%d, v%d" % (vTm, vMc, FR))
    e("v_sub_f32 v%d, v%d, v%d" % (vT1, vMc, vTm))
    e("v_sub_f32 v%d, v%d, v%d" % (vT2, FR, vTm))
    e("v_exp_f32 v%d, v%d" % (vT1, vT1))
    e("v_exp_f32 v%d, v%d" % (vT2, vT2))
    e("s_nop 0")
    e("v_mul_f32 v%d, v%d, v%d" % (vL, vL, vT1))
    e("v_fma_f32 v%d, v%d, v%d, v%d" % (vL, FR + 1, vT2, vL))
    e("v_rcp_f32 v%d, v%d" % (vL, vL))
    e("s_nop 0")
    e("v_mul_f32 v%d, v%d, v%d" % (vL, vL, vThr))
    e("v_mul_f32 v%d, v%d, v%d" % (vT1, vT1, vL))
    e("v_mul_f32 v%d, v%d, v%d" % (vT2, vT2, vL))
    for hf in range(2):
        e("s_waitcnt vmcnt(0)")
        for r in range(64):
            e("v_mul_f32 v%d, v%d, v%d" % (O + 64 * hf + r, O + 64 * hf + r, vT1))
            e("v_fma_f32 v%d, v%d, v%d, v%d" % (O + 64 * hf + r, Q + r, vT2, O + 64 * hf + r))
        if hf == 0:
            load_half(1)
        for db in range(4 * hf, 4 * hf + 4):
            store_ctx(db)
    e("s_branch K2_NEXT")

    a.label("K2_DONE")
    if STAMP:
        e("s_waitcnt vmcnt(0)")
    stamp(a, 4); stamp(a, 5); stamp(a, 6); stamp(a, 7)
    stamp(a, 9, real=True)
    stamp_dump(a, 10, SWS, sW, sT0, kidx=1, wave=3)
    a.label("K2_END")
    e("s_endpgm")
    return kernel_desc(name, 256, 96, 256)
```

```python
import struct, os
from asmlib import *
from layout import *

LAUNCH = "; @launch kernel=k2a_attna_kernel grid=(256,1,1) block=(256,1,1) lds=65536"
THR = 8.0


def f32hex(x):
    return "0x%08x" % struct.unpack("<I", struct.pack("<f", x))[0]


def gen_k2a(a, name="k2a_attna_kernel"):
    e = a.e
    SWS = 4
    sW, sH, sQ32, sU, sKV, sWoff, sThr = 8, 9, 10, 11, 12, 13, 14
    sT0, sT1, sT2 = 15, 16, 17
    O, NM, Q = 0, 16, 32
    S = [40, 56]
    KF = [72, 80]
    VF = 88
    vL16, vA0, vA1, vV, vVoff, vTm, vT1, vT2, vG = 96, 97, 98, 99, 100, 101, 102, 103, 104
    WSR = sr(SWS, 4)

    a.raw(".p2align 8")
    a.label(name)
    e("s_cmp_ge_u32 s2, 256")
    e("s_cbranch_scc1 K2A_END")
    stamp(a, 0)
    stamp(a, 8, real=True)
    e("s_load_dwordx2 s[36:37], s[0:1], 96")
    e("v_lshrrev_b32 v1, 6, v0")
    e("v_and_b32 v2, 63, v0")
    e("v_readfirstlane_b32 s%d, v1" % sW)
    e("v_lshlrev_b32 v%d, 4, v2" % vL16)
    e("v_lshrrev_b32 v3, 5, v2")
    e("v_bfe_u32 v4, v2, 2, 2")
    e("v_lshl_add_u32 v3, v3, 2, v4")
    e("v_lshlrev_b32 v3, 6, v3")
    e("v_bfe_u32 v4, v2, 4, 1")
    e("v_and_b32 v5, 1, v2")
    e("v_lshl_add_u32 v4, v4, 1, v5")
    e("v_bfe_u32 v5, v2, 1, 1")
    e("v_lshl_add_u32 v4, v4, 1, v5")
    e("v_lshl_add_u32 v3, v4, 3, v3")
    e("v_add_u32 v%d, 2048, v3" % vVoff)
    e("s_and_b32 s%d, s2, 7" % sT0)
    e("s_lshl_b32 s%d, s%d, 1" % (sH, sT0))
    e("s_bfe_u32 s%d, s2, 0x10003" % sT0)
    e("s_add_u32 s%d, s%d, s%d" % (sH, sH, sT0))
    e("s_lshr_b32 s%d, s2, 4" % sT0)
    e("s_lshl_b32 s%d, s%d, 2" % (sT0, sT0))
    e("s_add_u32 s%d, s%d, s%d" % (sQ32, sT0, sW))
    e("s_lshl_b32 s%d, s%d, 12" % (sWoff, sW))
    e("s_lshl_b32 s%d, s%d, 18" % (sKV, sH))
    e("s_add_u32 s%d, s%d, 0x%x" % (sKV, sKV, WS_KVA))
    e("s_add_u32 s%d, s%d, s%d" % (sKV, sKV, sWoff))
    e("s_mov_b32 s%d, %s" % (sThr, f32hex(THR)))
    e("s_waitcnt lgkmcnt(0)")
    e("s_mov_b32 s%d, s36" % SWS)
    e("s_mov_b32 s%d, s37" % (SWS + 1))
    e("s_mov_b32 s%d, 0x%x" % (SWS + 2, WS_BYTES))
    e("s_mov_b32 s%d, 0x20000" % (SWS + 3))

    def dma(du):
        f = []
        f.append("s_add_u32 s%d, s%d, %d" % (sT0, sU, du))
        f.append("s_lshl_b32 s%d, s%d, 14" % (sT1, sT0))
        f.append("s_add_u32 s%d, s%d, s%d" % (sT1, sT1, sKV))
        f.append("s_cmp_lt_u32 s%d, 16" % sT0)
        f.append("s_cselect_b32 s%d, s%d, 0x7ff00000" % (sT1, sT1))
        f.append("s_and_b32 s%d, s%d, 3" % (sT0, sT0))
        f.append("s_lshl_b32 s%d, s%d, 14" % (sT0, sT0))
        f.append("s_add_u32 m0, s%d, s%d" % (sT0, sWoff))
        f.append("s_nop 0")
        for p in range(4):
            f.append("buffer_load_dwordx4 v%d, %s, s%d offen offset:%d lds" % (vL16, WSR, sT1, p * 1024))
        return f

    e("s_mov_b32 s%d, 0" % sU)
    e("s_lshl_b32 s%d, s%d, 6" % (sT0, sH))
    e("s_add_u32 s%d, s%d, s%d" % (sT0, sT0, sQ32))
    e("s_lshl_b32 s%d, s%d, 11" % (sT0, sT0))
    e("s_add_u32 s%d, s%d, 0x%x" % (sT0, sT0, WS_QA))
    for s in range(2):
        e("buffer_load_dwordx4 %s, v%d, %s, s%d offen offset:%d" % (vr(Q + 4 * s, 4), vL16, WSR, sT0, s * 1024))
    e("v_and_b32 v3, 31, v2")
    e("v_lshlrev_b32 v3, 2, v3")
    e("s_lshl_b32 s%d, s%d, 7" % (sT0, sQ32))
    e("s_add_u32 s%d, s%d, 0x%x" % (sT0, sT0, WS_G))
    e("buffer_load_dword v%d, v3, %s, s%d offen" % (vG, WSR, sT0))
    for f in dma(0) + dma(1) + dma(2):
        e(f)
    for r in range(16):
        e("v_mov_b32 v%d, 0" % (O + r))
    e("s_waitcnt vmcnt(8)")
    e("s_barrier")

    def kread(kf, va, tile):
        return ["ds_read_b128 %s, v%d offset:%d" % (vr(KF[kf] + 4 * s, 4), va, tile * 4096 + s * 1024) for s in range(2)]

    def vread(tile):
        return ["ds_read_b64_tr_b16 %s, v%d offset:%d" % (vr(VF + 4 * t + 2 * u, 2), vV, tile * 4096 + t * 1024 + u * 512)
                for t in range(2) for u in range(2)]

    def qk(sb, kf, cz=False):
        return ["v_mfma_f32_32x32x16_bf16 %s, %s, %s, %s" % (vr(S[sb], 16), vr(KF[kf], 4), vr(Q, 4), "0" if cz else vr(NM, 16)),
                "v_mfma_f32_32x32x16_bf16 %s, %s, %s, %s" % (vr(S[sb], 16), vr(KF[kf] + 4, 4), vr(Q + 4, 4), vr(S[sb], 16))]

    def maxops(sb):
        b = S[sb]
        ops = ["v_max3_f32 v%d, v%d, v%d, v%d" % (vTm, b, b + 1, b + 2)]
        for k in range(3, 15, 2):
            ops.append("v_max3_f32 v%d, v%d, v%d, v%d" % (vTm, vTm, b + k, b + k + 1))
        ops.append("v_max_f32 v%d, v%d, v%d" % (vTm, vTm, b + 15))
        return ops

    def xhalf_max():
        e("v_mov_b32 v%d, v%d" % (vT1, vTm))
        e("s_nop 1")
        e("v_permlane32_swap_b32 v%d, v%d" % (vTm, vT1))
        e("s_nop 1")
        e("v_max_f32 v%d, v%d, v%d" % (vTm, vTm, vT1))

    for f in kread(0, vL16, 0) + kread(1, vL16, 1):
        e(f)
    e("s_waitcnt lgkmcnt(2)")
    for m in qk(0, 0, cz=True):
        e(m)
    e("s_nop 7")
    e("s_nop 7")
    for op in maxops(0):
        e(op)
    xhalf_max()
    for r in range(16):
        e("v_sub_f32 v%d, v%d, v%d" % (S[0] + r, S[0] + r, vTm))
        e("v_sub_f32 v%d, 0, v%d" % (NM + r, vTm))
    slow = []
    a.label("K2A_LOOP")
    e("s_waitcnt vmcnt(4) lgkmcnt(0)")
    e("s_barrier")
    e("s_and_b32 s%d, s%d, 3" % (sT0, sU))
    e("s_lshl_b32 s%d, s%d, 14" % (sT0, sT0))
    e("v_add_u32 v%d, s%d, v%d" % (vA0, sT0, vL16))
    e("v_add_u32 v%d, s%d, v%d" % (vV, sT0, vVoff))
    e("s_add_u32 s%d, s%d, 0x4000" % (sT0, sT0))
    e("s_and_b32 s%d, s%d, 0xffff" % (sT0, sT0))
    e("v_add_u32 v%d, s%d, v%d" % (vA1, sT0, vL16))
    for f in dma(3):
        e(f)
    for tl in range(4):
        cur, nxt = tl & 1, 1 - (tl & 1)
        b = S[cur]
        e("s_waitcnt lgkmcnt(0)")
        m = qk(nxt, nxt)
        e(m[0])
        for f in vread(tl):
            e(f)
        e(m[1])
        t2 = tl + 2
        for f in (kread(cur, vA0, t2) if t2 < 4 else kread(cur, vA1, t2 - 4)):
            e(f)
        for i in range(16 + 2):
            if i < 16:
                e("v_exp_f32 v%d, v%d" % (b + i, b + i))
            k = i - 2
            if k >= 0 and (k & 1):
                e("v_cvt_pk_bf16_f32 v%d, v%d, v%d" % (b + (k >> 1), b + k - 1, b + k))
        mo = maxops(nxt)
        e(mo[0])
        e("s_waitcnt lgkmcnt(2)")
        e("v_mfma_f32_32x32x16_bf16 %s, %s, %s, %s" % (vr(O, 16), vr(VF, 4), vr(b, 4), vr(O, 16)))
        for op in mo[1:5]:
            e(op)
        e("v_mfma_f32_32x32x16_bf16 %s, %s, %s, %s" % (vr(O, 16), vr(VF + 4, 4), vr(b + 4, 4), vr(O, 16)))
        for op in mo[5:]:
            e(op)
        e("v_cmp_lt_f32 vcc, s%d, v%d" % (sThr, vTm))
        e("s_cbranch_vccnz K2A_SLOW%d" % tl)
        a.label("K2A_BACK%d" % tl)
        slow.append((tl, nxt))
    e("s_add_u32 s%d, s%d, 1" % (sU, sU))
    e("s_cmp_lt_u32 s%d, 16" % sU)
    e("s_cbranch_scc1 K2A_LOOP")
    stamp(a, 1)
    e("s_nop 7")
    e("s_nop 7")
    e("v_mov_b32 v%d, v%d" % (vT1, O + 12))
    e("v_mov_b32 v%d, v%d" % (vT2, O + 12))
    e("s_nop 1")
    e("v_permlane32_swap_b32 v%d, v%d" % (vT1, vT2))
    e("s_nop 1")
    e("v_rcp_f32 v%d, v%d" % (vT2, vT2))
    e("s_nop 0")
    e("v_mul_f32 v%d, v%d, v%d" % (vT2, vT2, vG))
    for r in range(16):
        e("v_mul_f32 v%d, v%d, v%d" % (O + r, O + r, vT2))
    e("s_mov_b32 exec_lo, 0")
    for r in range(12, 16):
        e("v_mov_b32 v%d, 0" % (O + r))
    e("s_mov_b32 exec_lo, -1")
    for r in range(8):
        e("v_cvt_pk_bf16_f32 v%d, v%d, v%d" % (S[0] + r, O + 2 * r, O + 2 * r + 1))
    e("s_mul_i32 s%d, s%d, 288" % (sT0, sQ32))
    e("s_lshl_b32 s%d, s%d, 1" % (sT1, sH))
    e("s_add_u32 s%d, s%d, s%d" % (sT0, sT0, sT1))
    e("s_add_u32 s%d, s%d, 256" % (sT0, sT0))
    e("s_lshl_b32 s%d, s%d, 10" % (sT0, sT0))
    e("s_add_u32 s%d, s%d, 0x%x" % (sT0, sT0, WS_CTX))
    for t in range(2):
        e("buffer_store_dwordx4 %s, v%d, %s, s%d offen offset:%d" % (vr(S[0] + 4 * t, 4), vL16, WSR, sT0, t * 1024))
    if STAMP:
        e("s_waitcnt vmcnt(0)")
    for k in range(2, 8):
        stamp(a, k)
    stamp(a, 9, real=True)
    stamp_dump(a, 10, SWS, sW, sT0, kidx=2, wave=0)
    e("s_endpgm")
    for tl, sb in slow:
        a.label("K2A_SLOW%d" % tl)
        e("s_nop 7")
        e("s_nop 7")
        xhalf_max()
        e("v_max_f32 v%d, 0, v%d" % (vTm, vTm))
        e("v_sub_f32 v%d, 0, v%d" % (vT1, vTm))
        e("v_exp_f32 v%d, v%d" % (vT1, vT1))
        for r in range(16):
            e("v_sub_f32 v%d, v%d, v%d" % (S[sb] + r, S[sb] + r, vTm))
            e("v_sub_f32 v%d, v%d, v%d" % (NM + r, NM + r, vTm))
            e("v_mul_f32 v%d, v%d, v%d" % (O + r, O + r, vT1))
        e("s_nop 1")
        e("s_branch K2A_BACK%d" % tl)
    a.label("K2A_END")
    e("s_endpgm")
    return kernel_desc(name, 112, 96, 112)
```

```python
import struct, os
from asmlib import *
from layout import *

LAUNCH = "; @launch kernel=k3_oproj_kernel grid=(224,1,1) block=(256,1,1) lds=65536"
DEPTH = 6


def gen_k3(a, name="k3_oproj_kernel"):
    e = a.e
    SWS, SWB, SWA, SO = 4, 8, 12, 16
    sW, sQt, sNt, sCtx, sWk, sLds, sCnt = 20, 21, 22, 23, 24, 25, 26
    sT0, sT1, sT2 = 27, 28, 29
    ACC = 0
    CF = 64
    WF = CF + DEPTH * 8
    vL16 = WF + 16
    vWd = vL16 + 1
    vWr = vL16 + 3
    vT = vL16 + 5
    NV = vT + 8

    a.raw(".p2align 8")
    a.label(name)
    e("s_cmp_ge_u32 s2, 224")
    e("s_cbranch_scc1 K3_END")
    stamp(a, 0)
    stamp(a, 8, real=True)
    e("s_load_dwordx2 s[36:37], s[0:1], 96")
    e("s_load_dwordx2 s[38:39], s[0:1], 64")
    e("s_load_dwordx2 s[40:41], s[0:1], 16")
    e("s_load_dwordx2 s[42:43], s[0:1], 80")
    e("v_lshrrev_b32 v1, 6, v0")
    e("v_and_b32 v2, 63, v0")
    e("v_readfirstlane_b32 s%d, v1" % sW)
    e("v_lshlrev_b32 v%d, 4, v2" % vL16)
    e("s_and_b32 s%d, s2, 7" % sT0)
    e("s_lshr_b32 s%d, s2, 3" % sT1)
    e("s_lshl_b32 s%d, s%d, 2" % (sQt, sT0))
    e("s_and_b32 s%d, s%d, 3" % (sT2, sT1))
    e("s_add_u32 s%d, s%d, s%d" % (sQt, sQt, sT2))
    e("s_lshr_b32 s%d, s%d, 2" % (sNt, sT1))
    e("v_lshrrev_b32 v3, 3, v2")
    e("v_and_b32 v4, 7, v2")
    e("v_bfe_u32 v5, v2, 4, 1")
    e("v_lshlrev_b32 v5, 2, v5")
    e("v_xor_b32 v4, v4, v5")
    e("v_lshlrev_b32 v4, 4, v4")
    e("v_mul_u32_u24 v3, 896, v3")
    e("v_add_u32 v3, v3, v4")
    e("s_lshl_b32 s%d, s%d, 7" % (sT0, sNt))
    e("v_add_u32 v%d, s%d, v3" % (vWd, sT0))
    e("v_add_u32 v%d, %d, v%d" % (vWd + 1, 8 * 896 - 1024, vWd))
    e("v_lshrrev_b32 v3, 5, v2")
    e("v_bfe_u32 v4, v2, 2, 2")
    e("v_lshl_add_u32 v3, v3, 2, v4")
    e("v_lshlrev_b32 v3, 7, v3")
    e("v_bfe_u32 v4, v2, 4, 1")
    e("v_lshl_add_u32 v3, v4, 5, v3")
    e("v_and_b32 v4, 3, v2")
    e("v_lshl_add_u32 v3, v4, 3, v3")
    e("v_bfe_u32 v4, v2, 3, 1")
    e("s_mul_i32 s%d, s%d, %d" % (sLds, sW, DEPTH * 2048))
    e("v_add_u32 v3, s%d, v3" % sLds)
    e("v_lshl_add_u32 v%d, v4, 6, v3" % vWr)
    e("v_xor_b32 v%d, 64, v%d" % (vWr + 1, vWr))
    e("s_waitcnt lgkmcnt(0)")
    for (srd, p, nb) in ((SWS, 36, WS_BYTES), (SWB, 38, NB['wob']), (SWA, 40, NB['wo']), (SO, 42, NB['out'])):
        e("s_mov_b32 s%d, s%d" % (srd, p))
        e("s_mov_b32 s%d, s%d" % (srd + 1, p + 1))
        e("s_mov_b32 s%d, 0x%x" % (srd + 2, nb))
        e("s_mov_b32 s%d, 0x20000" % (srd + 3))
    e("s_mul_i32 s%d, s%d, 576" % (sCtx, sQt))
    e("s_mul_i32 s%d, s%d, 72" % (sT0, sW))
    e("s_add_u32 s%d, s%d, s%d" % (sCtx, sCtx, sT0))
    e("s_lshl_b32 s%d, s%d, 10" % (sCtx, sCtx))
    e("s_add_u32 s%d, s%d, 0x%x" % (sCtx, sCtx, WS_CTX))
    e("v_add_u32 v%d, %d, v%d" % (vT, 288 * 1024, vL16))
    e("s_mul_i32 s%d, s%d, %d" % (sWk, sW, 72 * 16 * 896))

    SWC = 44
    for r in range(4):
        e("s_mov_b32 s%d, s%d" % (SWC + r, SWB + r))
    e("s_mov_b32 s%d, 0x20000" % (SWC + 3))
    sStepA, sStepB, sN = 48, 49, 50
    e("s_movk_i32 s%d, %d" % (sStepA, 16 * 896))
    e("s_movk_i32 s%d, %d" % (sStepB, 16 * 896))
    e("s_mov_b32 s%d, 0" % sN)

    def issue(slot, odd):
        f = []
        f.append("buffer_load_dwordx4 %s, v%d, %s, s%d offen" % (vr(CF + slot * 8, 4), vL16, sr(SWS, 4), sCtx))
        f.append("s_add_u32 m0, s%d, %d" % (sLds, slot * 2048))
        f.append("buffer_load_dwordx4 %s, v%d, %s, s%d offen" % (vr(CF + slot * 8 + 4, 4), vT, sr(SWS, 4), sCtx))
        f.append("buffer_load_dwordx4 v%d, %s, s%d offen lds" % (vWd, sr(SWC, 4), sWk))
        f.append("buffer_load_dwordx4 v%d, %s, s%d offen offset:1024 lds" % (vWd + 1, sr(SWC, 4), sWk))
        f.append("s_add_u32 s%d, s%d, 1024" % (sCtx, sCtx))
        f.append("s_add_u32 s%d, s%d, s%d" % (sWk, sWk, sStepB if odd else sStepA))
        return f

    def switch_check():
        lab = a.newlabel("K3_NOSW")
        e("s_cmp_lg_u32 s%d, 3" % sW)
        e("s_cbranch_scc1 %s" % lab)
        e("s_mov_b32 s%d, s%d" % (SWC, SWA))
        e("s_mov_b32 s%d, s%d" % (SWC + 1, SWA + 1))
        e("s_mov_b32 s%d, s%d" % (SWC + 2, SWA + 2))
        e("s_mov_b32 s%d, 0" % sWk)
        e("s_movk_i32 s%d, %d" % (sStepB, 12 * 896))
        a.label(lab)

    def wread(slot, ws):
        return ["ds_read_b64_tr_b16 %s, v%d offset:%d" % (vr(WF + ws * 8 + nb * 4 + 2 * u, 2), vWr + nb, slot * 2048 + u * 1024)
                for nb in range(2) for u in range(2)]

    def mm(slot, ws, first):
        out = []
        for nb in range(2):
            for qb in range(2):
                acc = vr(ACC + (nb * 2 + qb) * 16, 16)
                out.append("v_mfma_f32_32x32x16_bf16 %s, %s, %s, %s" % (
                    acc, vr(WF + ws * 8 + nb * 4, 4), vr(CF + slot * 8 + qb * 4, 4), "0" if first else acc))
        return out

    NS = 72
    issued = 0
    for n in range(DEPTH - 1):
        for f in issue(n % DEPTH, n & 1):
            e(f)
        issued += 1
    e("s_waitcnt vmcnt(%d)" % (4 * (issued - 1)))
    for f in wread(0, 0):
        e(f)
    for n in range(NS):
        if n + 1 < NS:
            e("s_waitcnt vmcnt(%d) lgkmcnt(0)" % (4 * (issued - (n + 2))))
            nxt = wread((n + 1) % DEPTH, (n + 1) & 1)
        else:
            e("s_waitcnt lgkmcnt(0)")
            nxt = []
        ms = mm(n % DEPTH, n & 1, n == 0)
        fl = list(nxt)
        if issued < NS:
            if issued == 40:
                switch_check()
            fl += issue(issued % DEPTH, issued & 1)
            issued += 1
        interleave(a, ms, fl)
    stamp(a, 1)
    e("s_nop 7")
    e("s_nop 7")
    e("s_barrier")
    w_labels = [a.newlabel("K3_RW") for _ in range(4)]
    join = a.newlabel("K3_RJ")
    for w in range(4):
        a.label(w_labels[w])
        if w < 3:
            e("s_cmp_lg_u32 s%d, %d" % (sW, w))
            e("s_cbranch_scc1 %s" % w_labels[w + 1])
        for t in range(4):
            if t == w:
                continue
            k = w if w < t else w - 1
            for c in range(4):
                e("ds_write_b128 v%d, %s offset:%d" % (vL16, vr(ACC + t * 16 + 4 * c, 4), t * 12288 + k * 4096 + c * 1024))
        for r in range(16):
            e("v_mov_b32 v%d, v%d" % (CF + r, ACC + w * 16 + r))
        if w < 3:
            e("s_branch %s" % join)
    a.label(join)
    e("s_waitcnt lgkmcnt(0)")
    e("s_barrier")
    e("s_mul_i32 s%d, s%d, 12288" % (sT0, sW))
    e("v_add_u32 v%d, s%d, v%d" % (vT, sT0, vL16))
    for k in range(3):
        for c in range(4):
            e("ds_read_b128 %s, v%d offset:%d" % (vr(ACC + k * 16 + 4 * c, 4), vT, k * 4096 + c * 1024))
    e("s_waitcnt lgkmcnt(0)")
    for r in range(16):
        e("v_add_f32 v%d, v%d, v%d" % (CF + r, CF + r, ACC + r))
        e("v_add_f32 v%d, v%d, v%d" % (ACC + 16 + r, ACC + 16 + r, ACC + 32 + r))
        e("v_add_f32 v%d, v%d, v%d" % (CF + r, CF + r, ACC + 16 + r))
    for r in range(8):
        e("v_cvt_pk_bf16_f32 v%d, v%d, v%d" % (ACC + r, CF + 2 * r, CF + 2 * r + 1))
    e("s_and_b32 s%d, s%d, 1" % (sT0, sW))
    e("s_lshl_b32 s%d, s%d, 5" % (sT0, sT0))
    e("s_lshl_b32 s%d, s%d, 6" % (sT1, sQt))
    e("s_add_u32 s%d, s%d, s%d" % (sT0, sT0, sT1))
    e("s_mul_i32 s%d, s%d, 896" % (sT0, sT0))
    e("s_lshr_b32 s%d, s%d, 1" % (sT1, sW))
    e("s_lshl_b32 s%d, s%d, 6" % (sT1, sT1))
    e("s_add_u32 s%d, s%d, s%d" % (sT0, sT0, sT1))
    e("s_lshl_b32 s%d, s%d, 7" % (sT1, sNt))
    e("s_add_u32 s%d, s%d, s%d" % (sT0, sT0, sT1))
    e("v_lshrrev_b32 v%d, 4, v%d" % (vT, vL16))
    e("v_and_b32 v%d, 31, v%d" % (vT + 1, vT))
    e("v_mul_u32_u24 v%d, 896, v%d" % (vT + 1, vT + 1))
    e("v_lshrrev_b32 v%d, 5, v%d" % (vT, vT))
    e("v_lshl_add_u32 v%d, v%d, 3, v%d" % (vT, vT, vT + 1))
    for i in range(4):
        e("buffer_store_dwordx2 %s, v%d, %s, s%d offen offset:%d" % (vr(ACC + 2 * i, 2), vT, sr(SO, 4), sT0, i * 16))
    if STAMP:
        e("s_waitcnt vmcnt(0)")
    for k in range(2, 8):
        stamp(a, k)
    stamp(a, 9, real=True)
    stamp_dump(a, 10, SWS, sW, sT0, kidx=3, wave=0)
    a.label("K3_END")
    e("s_endpgm")
    nv = (NV + 7) // 8 * 8
    return kernel_desc(name, nv, 96, nv)
```

```python
MB = 1 << 20
WS_KVB = 0
WS_QB = 32 * MB
WS_QA = 48 * MB
WS_KVA = 50 * MB
WS_CTX = 56 * MB
WS_G = 76 * MB
WS_FLAG = 77 * MB
WS_PART = 80 * MB
WS_BYTES = 256 * MB

KARG = dict(x=0, wqkv=8, wo=16, bx=24, ckv=32, wq=40, wuk=48, wuv=56, wob=64, gw=72, out=80, dbg=88, ws=96)
NB = dict(x=1835008, wqkv=1204224, wo=401408, ckv=4194304, wq=3670016, wuk=8388608, wuv=8388608,
          wob=3670016, gw=896, out=1835008)
LOG2E = 1.4426950408889634
```

```python
import sys
sys.path.insert(0, "dev")
from asmlib import *
from layout import *
import k1

NAME = "gated_mix__mha_block__compressed_kv_cla__prompt"
HEADER = open("cdna_kernels/%s.s.ref" % NAME).read().split("; Override launch")[0]


def build(which):
    launches = []
    a = Asm()
    a.raw('.amdgcn_target "amdgcn-amd-amdhsa--gfx950"')
    a.raw(".text")
    descs = []
    if "k1" in which:
        descs.append(k1.gen_k1(a))
        launches.append(k1.LAUNCH)
    if "k2" in which:
        import k2
        a.vq = []
        descs.append(k2.gen_k2(a))
        launches.append(k2.LAUNCH)
    if "k2a" in which:
        import k2a
        a.vq = []
        descs.append(k2a.gen_k2a(a))
        launches.append(k2a.LAUNCH)
    if "k3" in which:
        import k3
        a.vq = []
        descs.append(k3.gen_k3(a))
        launches.append(k3.LAUNCH)
    return HEADER + "\n".join(launches) + "\n" + a.text() + "".join(descs)


if __name__ == "__main__":
    which = sys.argv[1].split(",")
    out = sys.argv[2] if len(sys.argv) > 2 else "cdna_kernels/%s.s" % NAME
    open(out, "w").write(build(which))
    print("wrote", out)
```

```python
import struct, os
from asmlib import *
from layout import *


def f32hex(x):
    return "0x%08x" % struct.unpack("<I", struct.pack("<f", x))[0]


class GB:
    SX, SW, SWS = 4, 8, 12
    sW, sWr, sWc = 16, 17, 18
    sXslot, sXrd, sDelta = 19, 20, 21
    sWk, sXk, sWstep = 22, 23, 24
    sWoffW, sWoffX = 25, 26
    sLoop = 27
    sT0, sT1, sT2, sT3 = 28, 29, 30, 31
    sOut, sOstep = 32, 33
    sRow0, sCol0, sLdx, sLdw, sHW = 34, 35, 36, 37, 38
    sCA = 40
    sPX, sPW, sPXk, sPWk = 68, 69, 70, 71
    sRot, sXT, sWT = 50, 51, 39
    ACC = 0
    XF = [128, 176]
    WF = [144, 192]
    vXa = 224
    vWa = 226
    vOX = 234
    vOW = 238
    vSt = 240
    vStV = 242
    vLane = 244
    vT = 245
    vPFX, vPFW, vPFd = 253, 254, 255


def g_setup_static(a):
    e = a.e
    G = GB
    L = "v%d" % G.vLane
    t = G.vT
    e("v_and_b32 %s, 63, v0" % L)
    e("v_lshrrev_b32 v%d, 6, v0" % t)
    e("s_nop 0")
    e("v_readfirstlane_b32 s%d, v%d" % (G.sW, t))
    e("s_nop 3")
    e("s_and_b32 s%d, s%d, 3" % (G.sWr, G.sW))
    e("s_lshr_b32 s%d, s%d, 2" % (G.sWc, G.sW))
    e("s_lshl_b32 s%d, s%d, 12" % (G.sWoffX, G.sW))
    e("v_bfe_u32 v%d, %s, 3, 1" % (t, L))
    e("v_lshlrev_b32 v%d, 4, v%d" % (t, t))
    e("v_and_b32 v%d, 7, %s" % (t + 1, L))
    e("v_add_u32 v%d, v%d, v%d" % (t, t, t + 1))
    e("v_bfe_u32 v%d, %s, 4, 1" % (t + 1, L))
    e("v_lshrrev_b32 v%d, 5, %s" % (t + 2, L))
    e("v_lshl_add_u32 v%d, v%d, 5, v%d" % (t + 3, t + 1, t))
    e("v_lshlrev_b32 v%d, 4, v%d" % (t + 3, t + 3))
    e("v_lshl_add_u32 v%d, v%d, 10, v%d" % (G.vSt, t + 2, t + 3))
    e("v_add_u32 v%d, 128, v%d" % (G.vSt + 1, G.vSt))
    e("v_lshrrev_b32 v%d, 4, %s" % (t + 3, L))
    e("v_lshlrev_b32 v%d, 4, v%d" % (t + 3, t + 3))
    e("v_lshl_add_u32 v%d, v%d, 6, v%d" % (G.vStV, t, t + 3))
    e("v_add_u32 v%d, 512, v%d" % (G.vStV + 1, G.vStV))


def g_setup_task(a, N):
    e = a.e
    G = GB
    L = "v%d" % G.vLane
    t = G.vT
    RB = N * 2
    e("v_bfe_u32 v%d, %s, 3, 1" % (t, L))
    e("v_and_b32 v%d, 7, %s" % (t + 1, L))
    e("v_lshl_add_u32 v%d, v%d, 4, v%d" % (t + 2, t, t + 1))
    e("v_bfe_u32 v%d, %s, 1, 2" % (t + 3, L))
    e("v_lshl_add_u32 v%d, v%d, 2, v%d" % (t + 3, t, t + 3))
    e("v_lshrrev_b32 v%d, 4, %s" % (t + 4, L))
    e("v_xor_b32 v%d, v%d, v%d" % (t + 3, t + 3, t + 4))
    e("v_lshlrev_b32 v%d, 4, v%d" % (t + 3, t + 3))
    e("s_lshl_b32 s%d, s%d, 6" % (G.sT0, G.sWr))
    e("v_add_u32 v%d, s%d, v%d" % (t + 2, G.sT0, t + 2))
    e("v_lshl_add_u32 v%d, v%d, 7, v%d" % (t + 2, t + 2, t + 3))
    e("v_add_u32 v%d, 0x10000, v%d" % (G.vXa, t + 2))
    e("v_xor_b32 v%d, 64, v%d" % (G.vXa + 1, G.vXa))
    NBW = N // 64
    e("v_bfe_u32 v%d, %s, 2, 2" % (t, L))
    e("v_lshl_add_u32 v%d, v%d, 3, v%d" % (t + 1, t + 4, t))
    e("v_mul_u32_u24 v%d, %d, v%d" % (t + 1, RB, t + 1))
    e("v_bfe_u32 v%d, %s, 1, 1" % (t + 2, L))
    e("v_bfe_u32 v%d, %s, 4, 1" % (t + 3, L))
    e("v_lshl_add_u32 v%d, v%d, 1, v%d" % (t + 2, t + 2, t + 3))
    e("v_lshl_add_u32 v%d, v%d, 4, v%d" % (t + 1, t + 2, t + 1))
    e("v_and_b32 v%d, 1, %s" % (t + 2, L))
    e("v_lshl_add_u32 v%d, v%d, 3, v%d" % (t + 1, t + 2, t + 1))
    e("s_mul_i32 s%d, s%d, %d" % (G.sT0, G.sWc, NBW))
    for jj in range(NBW):
        e("s_add_u32 s%d, s%d, %d" % (G.sT1, G.sT0, jj))
        e("v_xor_b32 v%d, s%d, v%d" % (t + 2, G.sT1, t))
        e("v_lshl_add_u32 v%d, v%d, 6, v%d" % (G.vWa + 2 * jj, t + 2, t + 1))
        e("v_xor_b32 v%d, 16, v%d" % (G.vWa + 2 * jj + 1, G.vWa + 2 * jj))
    e("v_lshrrev_b32 v%d, 3, %s" % (t, L))
    e("s_lshl_b32 s%d, s%d, 5" % (G.sT0, G.sW))
    e("s_add_u32 s%d, s%d, s%d" % (G.sT0, G.sT0, G.sRow0))
    e("v_add_u32 v%d, s%d, v%d" % (t, G.sT0, t))
    e("v_mul_lo_u32 v%d, v%d, s%d" % (t, t, G.sLdx))
    e("v_and_b32 v%d, 7, %s" % (t + 1, L))
    e("v_xor_b32 v%d, v%d, v%d" % (t + 1, t + 1, t + 4))
    e("v_lshl_add_u32 v%d, v%d, 4, v%d" % (t, t + 1, t))
    e("s_lshl_b32 s%d, s%d, 3" % (G.sT0, G.sLdx))
    e("s_sub_u32 s%d, s%d, 1024" % (G.sT1, G.sT0))
    e("v_mov_b32 v%d, v%d" % (G.vOX, t))
    e("v_add_u32 v%d, s%d, v%d" % (G.vOX + 1, G.sT1, t))
    e("s_lshl_b32 s%d, s%d, 1" % (G.sT0, G.sT0))
    e("v_xor_b32 v%d, 64, v%d" % (t, t))
    e("v_add_u32 v%d, s%d, v%d" % (G.vOX + 2, G.sT0, t))
    e("v_add_u32 v%d, s%d, v%d" % (G.vOX + 3, G.sT1, G.vOX + 2))
    CPR = RB // 16
    lg = 5 if N == 256 else 4
    for q in range(N // 128):
        e("v_lshrrev_b32 v%d, %d, %s" % (t, lg, L))
        if q:
            e("v_add_u32 v%d, 2, v%d" % (t, t))
        e("v_and_b32 v%d, %d, %s" % (t + 1, CPR - 1, L))
        e("v_lshlrev_b32 v%d, 2, v%d" % (t + 2, t))
        e("v_xor_b32 v%d, v%d, v%d" % (t + 1, t + 1, t + 2))
        e("s_bfe_u32 s%d, s%d, 0x10001" % (G.sT0, G.sW))
        e("v_xor_b32 v%d, s%d, v%d" % (t + 1, G.sT0, t + 1))
        e("v_lshrrev_b32 v%d, 2, v%d" % (t + 2, t + 1))
        e("v_add_u32 v%d, s%d, v%d" % (t + 2, G.sCol0, t + 2))
        e("v_mul_lo_u32 v%d, v%d, s%d" % (t + 2, t + 2, G.sHW))
        e("v_and_b32 v%d, 3, v%d" % (t + 1, t + 1))
        e("v_lshl_add_u32 v%d, v%d, 3, v%d" % (t + 2, t + 1, t + 2))
        e("s_lshl_b32 s%d, s%d, 2" % (G.sT0, G.sW))
        e("v_add_u32 v%d, s%d, v%d" % (t, G.sT0, t))
        e("v_mul_lo_u32 v%d, v%d, s%d" % (t, t, G.sLdw))
        e("v_lshl_add_u32 v%d, v%d, 1, v%d" % (t, t + 2, t))
        if q:
            e("v_subrev_u32 v%d, 1024, v%d" % (t, t))
        e("v_mov_b32 v%d, v%d" % (G.vOW + q, t))
    e("v_and_b32 v%d, 7, %s" % (t, L))
    e("s_lshl_b32 s%d, s%d, 6" % (G.sT0, G.sPX))
    e("s_lshl_b32 s%d, s%d, 3" % (G.sT1, G.sW))
    e("s_add_u32 s%d, s%d, s%d" % (G.sT0, G.sT0, G.sT1))
    e("s_add_u32 s%d, s%d, s%d" % (G.sT0, G.sT0, G.sRow0))
    e("v_add_u32 v%d, s%d, v%d" % (t + 1, G.sT0, t))
    e("v_mul_lo_u32 v%d, v%d, s%d" % (G.vPFX, t + 1, G.sLdx))
    if N == 256:
        e("v_add_u32 v%d, s%d, v%d" % (t + 1, G.sT1, t))
        e("s_lshl_b32 s%d, s%d, 7" % (G.sT0, G.sPW))
    else:
        e("v_and_b32 v%d, 3, %s" % (t, L))
        e("s_lshr_b32 s%d, s%d, 1" % (G.sT0, G.sPW))
        e("s_lshl_b32 s%d, s%d, 5" % (G.sT0, G.sT0))
        e("s_lshl_b32 s%d, s%d, 2" % (G.sT1, G.sW))
        e("s_add_u32 s%d, s%d, s%d" % (G.sT0, G.sT0, G.sT1))
        e("v_add_u32 v%d, s%d, v%d" % (t + 1, G.sT0, t))
        e("s_and_b32 s%d, s%d, 1" % (G.sT0, G.sPW))
        e("s_lshl_b32 s%d, s%d, 7" % (G.sT0, G.sT0))
    e("v_mul_lo_u32 v%d, v%d, s%d" % (t + 1, t + 1, G.sLdw))
    e("s_mul_i32 s%d, s%d, s%d" % (G.sT1, G.sCol0, G.sHW))
    e("s_lshl_b32 s%d, s%d, 1" % (G.sT1, G.sT1))
    e("s_add_u32 s%d, s%d, s%d" % (G.sT0, G.sT0, G.sT1))
    e("v_add_u32 v%d, s%d, v%d" % (G.vPFW, G.sT0, t + 1))
    e("s_mov_b32 s%d, 0" % G.sPXk)
    e("s_mov_b32 s%d, 0" % G.sPWk)
    e("s_mul_i32 s%d, s%d, %d" % (G.sWoffW, G.sW, 4 * RB))
    e("s_lshl_b32 s%d, s%d, 5" % (G.sWstep, G.sLdw))
    e("s_mov_b32 s%d, 0x10000" % G.sXslot)
    e("s_mov_b32 s%d, 0" % G.sXrd)
    e("s_mov_b32 s%d, 0" % G.sWT)
    e("s_mov_b32 s%d, 0" % G.sXT)


def g_main(a, N, NH, vtype, tag, stflag=""):
    e = a.e
    G = GB
    RB = N * 2
    NBW = N // 64
    a.vq = []

    def tau(sCnt, sDst):
        if NH == 32:
            return ["s_add_u32 s%d, s%d, s%d" % (sDst, sCnt, G.sRot),
                    "s_and_b32 s%d, s%d, 3" % (sDst, sDst),
                    "s_andn2_b32 s%d, s%d, 3" % (G.sT2, sCnt),
                    "s_or_b32 s%d, s%d, s%d" % (sDst, sDst, G.sT2),
                    "s_add_u32 s%d, s%d, 1" % (sCnt, sCnt)]
        nt = NH // 2
        return ["s_add_u32 s%d, s%d, s%d" % (sDst, sCnt, G.sRot),
                "s_sub_u32 s%d, s%d, %d" % (G.sT2, sDst, nt),
                "s_cmp_ge_u32 s%d, %d" % (sDst, nt),
                "s_cselect_b32 s%d, s%d, s%d" % (sDst, G.sT2, sDst),
                "s_add_u32 s%d, s%d, 1" % (sCnt, sCnt)]

    def dmaW(b):
        if b >= NH:
            return []
        f = []
        if b % 2 == 0:
            f += tau(G.sWT, G.sWk)
            f.append("s_mul_i32 s%d, s%d, s%d" % (G.sWk, G.sWk, G.sWstep))
            f.append("s_lshl_b32 s%d, s%d, 1" % (G.sWk, G.sWk))
        f += ["s_add_u32 m0, s%d, %d" % (G.sWoffW, (b & 3) * 16384), "s_nop 0"]
        for q in range(N // 128):
            ins = "buffer_load_dwordx4 v%d, %s, s%d offen offset:%d lds" % (G.vOW + q, sr(G.SW, 4), G.sWk, q * 1024)
            f.append((lambda ins=ins: a.vm(ins, ('W', b))))
        if b % 2 == 0:
            f.append("s_add_u32 s%d, s%d, s%d" % (G.sWk, G.sWk, G.sWstep))
        return f

    def dmaX(T, half):
        if 2 * T >= NH:
            return []
        f = []
        if half == 0:
            f += tau(G.sXT, G.sXk)
            f.append("s_add_u32 m0, s%d, s%d" % (G.sXslot, G.sWoffX))
            f.append("s_lshl_b32 s%d, s%d, 7" % (G.sXk, G.sXk))
        else:
            f.append("s_add_u32 s%d, s%d, s%d" % (G.sT0, G.sXslot, G.sWoffX))
            f.append("s_add_u32 m0, s%d, 0x800" % G.sT0)
            f.append("s_add_u32 s%d, s%d, 0x8000" % (G.sXslot, G.sXslot))
        for p in range(2):
            ins = "buffer_load_dwordx4 v%d, %s, s%d offen offset:%d lds" % (G.vOX + 2 * half + p, sr(G.SX, 4), G.sXk, p * 1024)
            f.append((lambda ins=ins: a.vm(ins, ('X', T))))
        if half == 1:
            f.append("s_cmp_ge_u32 s%d, 0x28000" % G.sXslot)
            f.append("s_cselect_b32 s%d, 0x10000, s%d" % (G.sXslot, G.sXslot))
        return f

    PFD = int(os.environ.get("GPFD", "0"))

    def pf(T, which):
        if PFD == 0 or 2 * T >= NH:
            return []
        if which == 0:
            ins = "buffer_load_dword v%d, v%d, %s, s%d offen" % (G.vPFd, G.vPFX, sr(G.SX, 4), G.sPXk)
            return [(lambda: a.vm(ins, ('P', T))), "s_add_u32 s%d, s%d, 128" % (G.sPXk, G.sPXk)]
        ins = "buffer_load_dword v%d, v%d, %s, s%d offen" % (G.vPFd, G.vPFW, sr(G.SW, 4), G.sPWk)
        return [(lambda: a.vm(ins, ('P', T))), "s_add_u32 s%d, s%d, s%d" % (G.sPWk, G.sPWk, G.sWstep),
                "s_add_u32 s%d, s%d, s%d" % (G.sPWk, G.sPWk, G.sWstep)]

    def reads(b):
        st = b & 1
        xr = ["ds_read_b128 %s, v%d offset:%d" % (vr(G.XF[st] + 4 * i, 4), G.vXa + (b & 1), (i >> 1) * 4096 + (i & 1) * 1024)
              for i in range(4)]
        wr = []
        for jj in range(NBW):
            for j in range(2):
                for u in range(2):
                    wr.append("ds_read_b64_tr_b16 %s, v%d offset:%d" % (
                        vr(G.WF[st] + 8 * jj + 4 * j + 2 * u, 2), G.vWa + 2 * jj + j, (b & 3) * 16384 + u * 4 * RB))
        return [xr[0]] + wr[:4] + [xr[1]] + wr[4:] + xr[2:]

    def mfmas(b, first):
        st = b & 1
        out = []
        for i in range(4):
            for c in range(2 * NBW):
                acc = vr(G.ACC + (i * 8 + c) * 4, 4)
                x = vr(G.XF[st] + 4 * i, 4)
                w = vr(G.WF[st] + 4 * c, 4)
                A, B = (x, w) if vtype else (w, x)
                out.append("v_mfma_f32_16x16x32_bf16 %s, %s, %s, %s" % (acc, A, B, "0" if first else acc))
        return out

    def addr_update():
        f = []
        f.append("s_add_u32 s%d, s%d, 0x8000" % (G.sT1, G.sXrd))
        f.append("s_cmp_ge_u32 s%d, 0x18000" % G.sT1)
        f.append("s_cselect_b32 s%d, 0, s%d" % (G.sT1, G.sT1))
        f.append("s_sub_u32 s%d, s%d, s%d" % (G.sDelta, G.sT1, G.sXrd))
        f.append("s_mov_b32 s%d, s%d" % (G.sXrd, G.sT1))
        for s in range(2):
            f.append("v_add_u32 v%d, s%d, v%d" % (G.vXa + s, G.sDelta, G.vXa + s))
        return f

    def half_iter(b):
        T = b >> 1
        n = a.vm_need(lambda t: t == ('W', b) or t == ('X', T))
        e("s_waitcnt vmcnt(%d) lgkmcnt(0)" % n)
        e("s_barrier")
        m = mfmas(b - 1, b == 1) if b > 0 else []
        f = reads(b) + dmaW(b + 3) + dmaX(T + 2, b & 1) + pf(T + PFD, b & 1) + (addr_update() if (b & 1) else [])
        interleave(a, m, f)
        return n

    for T in range(PFD):
        for f in pf(T, 0) + pf(T, 1):
            emit1(a, f)
    for f in dmaX(0, 0) + dmaX(0, 1) + dmaW(0) + dmaW(1) + dmaX(1, 0) + dmaX(1, 1) + dmaW(2):
        emit1(a, f)
    GS = os.environ.get("GSTAMP") == tag[:2]
    if GS:
        stamp(a, 4)
    for b in range(4):
        half_iter(b)
        if GS and b == 0:
            stamp(a, 5)
    nloop = (NH - 4 - 2 * max(2, PFD)) // 4
    b = 4
    if nloop >= 2:
        e("s_mov_b32 s%d, %d" % (G.sLoop, nloop))
        lab = "G_LOOP_%s" % tag
        a.label(lab)
        ns = [half_iter(4 + k) for k in range(4)]
        e("s_sub_u32 s%d, s%d, 1" % (G.sLoop, G.sLoop))
        e("s_cmp_lg_u32 s%d, 0" % G.sLoop)
        e("s_cbranch_scc1 %s" % lab)
        save = a.lines
        for bb in range(8, 4 + 4 * nloop):
            a.lines = []
            n = half_iter(bb)
            assert n == ns[bb & 3], (bb, n, ns)
        a.lines = save
        b = 4 + 4 * nloop
    while b < NH:
        half_iter(b)
        b += 1
    if GS:
        stamp(a, 6)
    e("s_waitcnt lgkmcnt(0)")
    e("s_barrier")
    for m in mfmas(NH - 1, False):
        e(m)
    e("s_nop 7")


def g_store_block(a, ib, jj, vtype, voff, soff, imm, pre=None, stflag=""):
    e = a.e
    G = GB
    tb = G.XF[0] + 8 * ((ib * 4 + jj) & 7)
    for j in range(2):
        if vtype:
            r0 = G.ACC + ((2 * ib + 0) * 8 + 2 * jj + j) * 4
            r1 = G.ACC + ((2 * ib + 1) * 8 + 2 * jj + j) * 4
        else:
            r0 = G.ACC + ((2 * ib + j) * 8 + 2 * jj + 0) * 4
            r1 = G.ACC + ((2 * ib + j) * 8 + 2 * jj + 1) * 4
        if pre:
            pre(r0, r1)
        e("v_cvt_pk_bf16_f32 v%d, v%d, v%d" % (tb + 4 * j, r0, r0 + 1))
        e("v_cvt_pk_bf16_f32 v%d, v%d, v%d" % (tb + 4 * j + 1, r0 + 2, r0 + 3))
        e("v_cvt_pk_bf16_f32 v%d, v%d, v%d" % (tb + 4 * j + 2, r1, r1 + 1))
        e("v_cvt_pk_bf16_f32 v%d, v%d, v%d" % (tb + 4 * j + 3, r1 + 2, r1 + 3))
        e("buffer_store_dwordx4 %s, v%d, %s, s%d offen offset:%d %s" % (vr(tb + 4 * j, 4), voff + j, sr(G.SWS, 4), soff, imm, stflag))
```

```python
import struct, os
from asmlib import *
from layout import *
from gblock import *

LAUNCH = "; @launch kernel=k1_proj_kernel grid=(256,1,1) block=(512,1,1) lds=163840"
ROTM = int(os.environ.get("ROTM", "3"))
STF = os.environ.get("STFLAG", "")


def gen_k1(a, name="k1_proj_kernel"):
    e = a.e
    G = GB
    sX, sJ = 41, 42
    sH, sIsV, sRb = 43, 48, 49
    RET, RET2 = 44, 46
    P = 52
    a.raw(".p2align 8")
    a.label(name)
    e("s_cmp_ge_u32 s2, 256")
    e("s_cbranch_scc1 K1_END")
    stamp(a, 0)
    stamp(a, 8, real=True)
    e("s_load_dwordx4 s[52:55], s[0:1], 0")
    e("s_load_dwordx4 s[56:59], s[0:1], 32")
    e("s_load_dwordx4 s[60:63], s[0:1], 48")
    e("s_load_dwordx2 s[64:65], s[0:1], 72")
    e("s_load_dwordx2 s[66:67], s[0:1], 96")
    g_setup_static(a)
    e("s_and_b32 s%d, s2, 7" % sX)
    e("s_lshr_b32 s%d, s2, 3" % sJ)
    e("s_mov_b32 s%d, %s" % (G.sCA, f32hex(LOG2E * 28 ** -0.5)))
    e("s_waitcnt lgkmcnt(0)")
    e("s_mov_b32 s%d, s66" % G.SWS)
    e("s_mov_b32 s%d, s67" % (G.SWS + 1))
    e("s_mov_b32 s%d, 0x%x" % (G.SWS + 2, WS_BYTES))
    e("s_mov_b32 s%d, 0x20000" % (G.SWS + 3))
    e("s_mov_b32 s%d, 0x20000" % (G.SX + 3))
    e("s_mov_b32 s%d, 0x20000" % (G.SW + 3))
    order = os.environ.get("K1ORDER", "stagger")
    if order == "stagger":
        e("s_bitcmp1_b32 s%d, 0" % sJ)
        e("s_cbranch_scc1 K1_ORDER_B")
    elif order == "b":
        e("s_branch K1_ORDER_B")
    e("s_call_b64 s[%d:%d], K1_TASK_G1" % (RET, RET + 1))
    stamp(a, 1)
    e("s_call_b64 s[%d:%d], K1_TASK_Q" % (RET, RET + 1))
    stamp(a, 2)
    e("s_call_b64 s[%d:%d], K1_TASK_A" % (RET, RET + 1))
    e("s_branch K1_FIN")
    a.label("K1_ORDER_B")
    e("s_call_b64 s[%d:%d], K1_TASK_Q" % (RET, RET + 1))
    stamp(a, 1)
    e("s_call_b64 s[%d:%d], K1_TASK_A" % (RET, RET + 1))
    stamp(a, 2)
    e("s_call_b64 s[%d:%d], K1_TASK_G1" % (RET, RET + 1))
    a.label("K1_FIN")
    stamp(a, 3)
    if STAMP:
        e("s_waitcnt vmcnt(0)")
    stamp(a, 7)
    stamp(a, 9, real=True)
    stamp_dump(a, 10, G.SWS, G.sW, G.sT0)
    a.label("K1_END")
    e("s_endpgm")

    def srd(base, plo, nbytes):
        e("s_mov_b32 s%d, s%d" % (base, plo))
        e("s_mov_b32 s%d, s%d" % (base + 1, plo + 1))
        e("s_mov_b32 s%d, %d" % (base + 2, nbytes))

    a.label("K1_TASK_G1")
    e("s_and_b32 s%d, s%d, 7" % (sRb, sJ))
    e("s_lshr_b32 s%d, s%d, 3" % (G.sT0, sJ))
    e("s_and_b32 s%d, s%d, 1" % (G.sT1, G.sT0))
    e("s_lshl_b32 s%d, s%d, 1" % (sH, sX))
    e("s_add_u32 s%d, s%d, s%d" % (sH, sH, G.sT1))
    e("s_lshr_b32 s%d, s%d, 1" % (sIsV, G.sT0))
    srd(G.SX, 56, NB['ckv'])
    e("s_cmp_eq_u32 s%d, 0" % sIsV)
    e("s_cselect_b32 s%d, s60, s62" % G.SW)
    e("s_cselect_b32 s%d, s61, s63" % (G.SW + 1))
    e("s_mov_b32 s%d, %d" % (G.SW + 2, NB['wuk']))
    e("s_lshl_b32 s%d, s%d, 8" % (G.sRow0, sRb))
    e("s_lshl_b32 s%d, s%d, 3" % (G.sCol0, sH))
    e("s_movk_i32 s%d, 2048" % G.sLdx)
    e("s_movk_i32 s%d, 8192" % G.sLdw)
    e("s_movk_i32 s%d, 32" % G.sHW)
    e("s_lshr_b32 s%d, s%d, 3" % (G.sPX, sJ))
    e("s_lshr_b32 s%d, s%d, 1" % (G.sPW, sRb))
    e("s_add_u32 s%d, s%d, s%d" % (G.sRot, G.sPX, G.sPW))
    e("s_and_b32 s%d, s%d, %d" % (G.sRot, G.sRot, ROTM))
    g_setup_task(a, 256)
    e("s_lshl_b32 s%d, s%d, 6" % (G.sT0, sH))
    e("s_lshl_b32 s%d, s%d, 3" % (G.sT1, sRb))
    e("s_add_u32 s%d, s%d, s%d" % (G.sT0, G.sT0, G.sT1))
    e("s_lshl_b32 s%d, s%d, 1" % (G.sT1, G.sWr))
    e("s_add_u32 s%d, s%d, s%d" % (G.sT0, G.sT0, G.sT1))
    e("s_lshl_b32 s%d, s%d, 5" % (G.sT0, G.sT0))
    e("s_lshl_b32 s%d, s%d, 4" % (G.sT1, sIsV))
    e("s_add_u32 s%d, s%d, s%d" % (G.sT0, G.sT0, G.sT1))
    e("s_lshl_b32 s%d, s%d, 3" % (G.sT1, G.sWc))
    e("s_add_u32 s%d, s%d, s%d" % (G.sT0, G.sT0, G.sT1))
    e("s_lshl_b32 s%d, s%d, 10" % (G.sOut, G.sT0))
    e("s_cmp_lg_u32 s%d, 0" % sIsV)
    e("s_cbranch_scc1 K1_G1V")
    for vtype in (0, 1):
        if vtype:
            a.label("K1_G1V")
        g_main(a, 256, 32, vtype, "g1_%d" % vtype)
        for ib in range(2):
            for jj in range(4):
                if jj == 2:
                    e("s_add_u32 s%d, s%d, 4096" % (G.sOut, G.sOut))
                g_store_block(a, ib, jj, vtype, G.vSt, G.sOut, (jj & 1) * 2048, stflag=STF)
            e("s_add_u32 s%d, s%d, %d" % (G.sOut, G.sOut, 32768 - 4096))
        e("s_setpc_b64 s[%d:%d]" % (RET, RET + 1))

    a.label("K1_G2MAIN")
    srd(G.SX, 52, NB['x'])
    e("s_movk_i32 s%d, 896" % G.sLdx)
    e("s_add_u32 s%d, s%d, s%d" % (G.sRot, G.sPX, G.sPW))
    e("s_and_b32 s%d, s%d, %d" % (G.sRot, G.sRot, ROTM))
    e("s_lshl_b32 s%d, s%d, 1" % (G.sRot, G.sRot))
    g_setup_task(a, 128)
    g_main(a, 128, 14, 0, "g2")
    e("s_setpc_b64 s[%d:%d]" % (RET2, RET2 + 1))

    a.label("K1_TASK_Q")
    e("s_and_b32 s%d, s%d, 7" % (sRb, sJ))
    e("s_lshl_b32 s%d, s%d, 1" % (sH, sX))
    e("s_lshr_b32 s%d, s%d, 4" % (G.sT0, sJ))
    e("s_add_u32 s%d, s%d, s%d" % (sH, sH, G.sT0))
    e("s_bfe_u32 s%d, s%d, 0x10003" % (sIsV, sJ))
    srd(G.SW, 58, NB['wq'])
    e("s_lshl_b32 s%d, s%d, 8" % (G.sRow0, sRb))
    e("s_lshl_b32 s%d, s%d, 3" % (G.sCol0, sH))
    e("s_lshl_b32 s%d, s%d, 2" % (G.sT0, sIsV))
    e("s_add_u32 s%d, s%d, s%d" % (G.sCol0, G.sCol0, G.sT0))
    e("s_movk_i32 s%d, 8192" % G.sLdw)
    e("s_movk_i32 s%d, 32" % G.sHW)
    e("s_lshr_b32 s%d, s%d, 3" % (G.sPX, sJ))
    e("s_lshr_b32 s%d, s%d, 1" % (G.sPW, sRb))
    e("s_call_b64 s[%d:%d], K1_G2MAIN" % (RET2, RET2 + 1))
    e("s_lshl_b32 s%d, s%d, 6" % (G.sT0, sH))
    e("s_lshl_b32 s%d, s%d, 3" % (G.sT1, sRb))
    e("s_add_u32 s%d, s%d, s%d" % (G.sT0, G.sT0, G.sT1))
    e("s_lshl_b32 s%d, s%d, 1" % (G.sT1, G.sWr))
    e("s_add_u32 s%d, s%d, s%d" % (G.sT0, G.sT0, G.sT1))
    e("s_lshl_b32 s%d, s%d, 4" % (G.sT0, G.sT0))
    e("s_lshl_b32 s%d, s%d, 3" % (G.sT1, sIsV))
    e("s_add_u32 s%d, s%d, s%d" % (G.sT0, G.sT0, G.sT1))
    e("s_lshl_b32 s%d, s%d, 2" % (G.sT1, G.sWc))
    e("s_add_u32 s%d, s%d, s%d" % (G.sT0, G.sT0, G.sT1))
    e("s_lshl_b32 s%d, s%d, 10" % (G.sOut, G.sT0))
    e("s_add_u32 s%d, s%d, 0x%x" % (G.sOut, G.sOut, WS_QB))
    for ib in range(2):
        for jj in range(2):
            g_store_block(a, ib, jj, 0, G.vSt, G.sOut, jj * 2048, stflag=STF)
        e("s_add_u32 s%d, s%d, 16384" % (G.sOut, G.sOut))
    e("s_setpc_b64 s[%d:%d]" % (RET, RET + 1))

    a.label("K1_TASK_A")
    e("s_cmp_ge_u32 s%d, 30" % sJ)
    e("s_cbranch_scc1 K1_GATE")
    e("s_cmp_ge_u32 s%d, 12" % sJ)
    e("s_cbranch_scc1 K1_A_RET")
    srd(G.SW, 54, NB['wqkv'])
    e("s_lshl_b32 s%d, s%d, 8" % (G.sRow0, sX))
    e("s_lshl_b32 s%d, s%d, 2" % (G.sCol0, sJ))
    e("s_movk_i32 s%d, 2688" % G.sLdw)
    e("s_movk_i32 s%d, 28" % G.sHW)
    e("s_bfe_u32 s%d, s%d, 0x20001" % (G.sPX, sJ))
    e("s_mov_b32 s%d, 0" % G.sPW)
    e("s_call_b64 s[%d:%d], K1_G2MAIN" % (RET2, RET2 + 1))
    e("s_lshl_b32 s%d, s%d, 2" % (G.sT0, sJ))
    e("s_lshl_b32 s%d, s%d, 1" % (G.sT1, G.sWc))
    e("s_add_u32 s%d, s%d, s%d" % (G.sT0, G.sT0, G.sT1))
    e("s_and_b32 s%d, s%d, 15" % (G.sT0, G.sT0))
    e("s_lshl_b32 s%d, s%d, 6" % (G.sT0, G.sT0))
    e("s_lshl_b32 s%d, s%d, 3" % (G.sT1, sX))
    e("s_add_u32 s%d, s%d, s%d" % (G.sT0, G.sT0, G.sT1))
    e("s_lshl_b32 s%d, s%d, 1" % (G.sT1, G.sWr))
    e("s_add_u32 s%d, s%d, s%d" % (G.sT0, G.sT0, G.sT1))
    e("s_lshr_b32 s%d, s%d, 2" % (G.sT2, sJ))
    e("s_cmp_eq_u32 s%d, 1" % G.sT2)
    e("s_cbranch_scc1 K1_A_K")
    e("s_cmp_eq_u32 s%d, 2" % G.sT2)
    e("s_cbranch_scc1 K1_A_V")

    def padfix(val):
        def f(r0, r1):
            e("s_mov_b32 exec_lo, 0")
            e("s_mov_b32 exec_hi, 0xffff0000")
            e("v_mov_b32 v%d, %s" % (r1, val))
            for r in (1, 2, 3):
                e("v_mov_b32 v%d, 0" % (r1 + r))
            e("s_mov_b64 exec, -1")
        return f

    def qfix(r0, r1):
        for r in range(4):
            e("v_mul_f32 v%d, s%d, v%d" % (r0 + r, G.sCA, r0 + r))
            e("v_mul_f32 v%d, s%d, v%d" % (r1 + r, G.sCA, r1 + r))
        padfix("0")(r0, r1)

    def a_epi(shift, base, voff, pre):
        e("s_lshl_b32 s%d, s%d, %d" % (G.sOut, G.sT0, shift))
        e("s_add_u32 s%d, s%d, 0x%x" % (G.sOut, G.sOut, base))
        for jj in range(2):
            for ib in range(2):
                g_store_block(a, ib, jj, 0, voff, G.sOut, 0, pre=pre, stflag=STF)
                e("s_add_u32 s%d, s%d, %d" % (G.sOut, G.sOut, (1 << shift) if ib == 0 else (63 << shift)))
        e("s_setpc_b64 s[%d:%d]" % (RET, RET + 1))
    a_epi(11, WS_QA, G.vSt, qfix)
    a.label("K1_A_K")
    a_epi(12, WS_KVA, G.vSt, padfix("0"))
    a.label("K1_A_V")
    a_epi(12, WS_KVA + 2048, G.vStV, padfix("1.0"))
    a.label("K1_A_RET")
    e("s_setpc_b64 s[%d:%d]" % (RET, RET + 1))

    a.label("K1_GATE")
    L = "v%d" % G.vLane
    srd(G.SX, 52, NB['x'])
    srd(G.SW, 64, NB['gw'])
    e("s_sub_u32 s%d, s%d, 30" % (G.sT0, sJ))
    e("s_lshl_b32 s%d, s%d, 1" % (G.sT1, sX))
    e("s_add_u32 s%d, s%d, s%d" % (G.sT3, G.sT0, G.sT1))
    e("s_lshl_b32 s%d, s%d, 7" % (G.sT0, G.sT3))
    e("s_lshl_b32 s%d, s%d, 4" % (G.sT1, G.sW))
    e("s_add_u32 s%d, s%d, s%d" % (G.sT0, G.sT0, G.sT1))
    e("v_and_b32 v2, 15, %s" % L)
    e("v_add_u32 v2, s%d, v2" % G.sT0)
    e("v_lshrrev_b32 v3, 4, %s" % L)
    e("v_mul_u32_u24 v3, 224, v3")
    e("v_mul_u32_u24 v4, 896, v2")
    e("v_add_u32 v4, v4, v3")
    e("v_mov_b32 v5, 0")
    for c in range(14):
        e("buffer_load_dwordx4 %s, v4, %s, 0 offen offset:%d" % (vr(8 + 4 * c, 4), sr(G.SX, 4), c * 16))
        e("buffer_load_dwordx4 %s, v3, %s, 0 offen offset:%d" % (vr(64 + 4 * c, 4), sr(G.SW, 4), c * 16))
    e("s_waitcnt vmcnt(0)")
    for r in range(56):
        e("v_dot2_f32_bf16 v5, v%d, v%d, v5" % (8 + r, 64 + r))
    e("s_nop 3")
    e("v_mov_b32 v6, v5")
    e("s_nop 1")
    e("v_permlane32_swap_b32 v5, v6")
    e("s_nop 1")
    e("v_add_f32 v5, v5, v6")
    e("v_mov_b32 v6, v5")
    e("s_nop 1")
    e("v_permlane16_swap_b32 v5, v6")
    e("s_nop 1")
    e("v_add_f32 v5, v5, v6")
    e("v_cvt_pk_bf16_f32 v5, v5, v5")
    e("v_lshlrev_b32 v5, 16, v5")
    e("v_mul_f32 v5, %s, v5" % f32hex(-LOG2E))
    e("v_exp_f32 v5, v5")
    e("s_nop 0")
    e("v_add_f32 v5, 1.0, v5")
    e("v_rcp_f32 v5, v5")
    e("s_nop 0")
    e("v_cvt_pk_bf16_f32 v5, v5, v5")
    e("v_lshlrev_b32 v5, 16, v5")
    e("v_sub_f32 v6, 1.0, v5")
    e("v_cvt_pk_bf16_f32 v6, v6, v6")
    e("v_lshlrev_b32 v6, 16, v6")
    e("v_lshlrev_b32 v2, 2, v2")
    e("s_mov_b32 s%d, 0x%x" % (G.sT0, WS_G))
    e("s_mov_b32 s%d, 0x%x" % (G.sT1, WS_G + 8192))
    e("s_mov_b64 exec, 0xffff")
    e("buffer_store_dword v5, v2, %s, s%d offen" % (sr(G.SWS, 4), G.sT0))
    e("buffer_store_dword v6, v2, %s, s%d offen" % (sr(G.SWS, 4), G.sT1))
    e("s_mov_b64 exec, -1")
    e("s_lshl_b32 s%d, s%d, 12" % (G.sT0, G.sT3))
    e("s_lshl_b32 s%d, s%d, 9" % (G.sT1, G.sW))
    e("s_add_u32 s%d, s%d, s%d" % (G.sT0, G.sT0, G.sT1))
    e("s_add_u32 s%d, s%d, 0x%x" % (G.sT0, G.sT0, WS_FLAG))
    e("v_lshlrev_b32 v2, 3, %s" % L)
    e("v_mov_b32 v8, 0")
    e("v_mov_b32 v9, 0")
    e("buffer_store_dwordx2 v[8:9], v2, %s, s%d offen" % (sr(G.SWS, 4), G.sT0))
    e("s_setpc_b64 s[%d:%d]" % (RET, RET + 1))
    return kernel_desc(name, 256, 96, 256)
```

```python
import struct, os
from asmlib import *
from layout import *

LAUNCH = "; @launch kernel=k2_attn_kernel grid=(256,1,1) block=(512,1,1) lds=163840"
SPLIT = int(os.environ.get("SPLIT", "36"))
THR = float(os.environ.get("THR", "32"))
PART_WAVE = 33 * 1024
PFD = int(os.environ.get("PFD", "7"))
BPRIO = int(os.environ.get("BPRIO", "1"))
LDS_A = 0x20000


def f32hex(x):
    return "0x%08x" % struct.unpack("<I", struct.pack("<f", x))[0]


def gen_k2(a, name="k2_attn_kernel"):
    e = a.e
    SWS = 4
    WSR = sr(SWS, 4)
    sW, sH, sI, sRole = 8, 9, 10, 11
    sQb, sKb0, sKb1, sMode = 12, 13, 14, 15
    sJw, sJ, sSeg = 16, 17, 18
    sKV = 19
    sN1, sTT = 20, 21
    sKb0a = 22
    sT = 23
    sC, sThrAdd = 24, 25
    sWoff = 26
    sT0, sT1, sT2, sT3 = 27, 28, 29, 30
    sPart, sFlag = 31, 32
    sEnd = 33
    sSpin = 34
    sInit, sPend = 35, 44
    C = LOG2E / 16.0

    a.raw(".p2align 8")
    a.label(name)
    e("s_cmp_ge_u32 s2, 256")
    e("s_cbranch_scc1 K2_END")
    stamp(a, 0)
    stamp(a, 8, real=True)
    e("s_load_dwordx2 s[36:37], s[0:1], 96")
    e("v_lshrrev_b32 v1, 6, v0")
    e("v_and_b32 v2, 63, v0")
    e("v_readfirstlane_b32 s%d, v1" % sW)
    e("s_lshr_b32 s%d, s2, 7" % sRole)
    e("s_and_b32 s%d, s2, 7" % sT0)
    e("s_lshl_b32 s%d, s%d, 1" % (sH, sT0))
    e("s_bfe_u32 s%d, s2, 0x10003" % sT0)
    e("s_add_u32 s%d, s%d, s%d" % (sH, sH, sT0))
    e("s_bfe_u32 s%d, s2, 0x30004" % sI)
    e("s_lshl_b32 s%d, s%d, 21" % (sKV, sH))
    e("s_sub_u32 s%d, 15, s%d" % (sQb, sI))
    e("s_lshl_b32 s%d, s%d, 2" % (sT0, sQb))
    e("s_add_u32 s%d, s%d, 4" % (sT0, sT0))
    e("s_cmp_eq_u32 s%d, 0" % sRole)
    e("s_cbranch_scc1 K2_PROD")
    e("s_mov_b32 s%d, 0" % sKb0)
    e("s_min_u32 s%d, s%d, %d" % (sKb1, sT0, SPLIT))
    e("s_cmp_gt_u32 s%d, %d" % (sT0, SPLIT))
    e("s_cselect_b32 s%d, 2, 0" % sMode)
    e("s_mov_b32 s%d, s%d" % (sN1, sKb1))
    e("s_mov_b32 s%d, s%d" % (sTT, sKb1))
    e("s_mov_b32 s%d, 1" % sSeg)
    e("s_branch K2_SETUP_DONE")
    a.label("K2_PROD")
    e("s_lshl_b32 s%d, s%d, 2" % (sT1, sI))
    e("s_add_u32 s%d, s%d, 4" % (sT1, sT1))
    e("s_cmp_gt_u32 s%d, %d" % (sT0, SPLIT))
    e("s_cbranch_scc1 K2_PROD2")
    e("s_mov_b32 s%d, s%d" % (sQb, sI))
    e("s_mov_b32 s%d, 0" % sKb0)
    e("s_mov_b32 s%d, s%d" % (sKb1, sT1))
    e("s_mov_b32 s%d, 0" % sMode)
    e("s_mov_b32 s%d, s%d" % (sN1, sT1))
    e("s_mov_b32 s%d, s%d" % (sTT, sT1))
    e("s_mov_b32 s%d, 1" % sSeg)
    e("s_branch K2_SETUP_DONE")
    a.label("K2_PROD2")
    e("s_mov_b32 s%d, %d" % (sKb0, SPLIT))
    e("s_mov_b32 s%d, s%d" % (sKb1, sT0))
    e("s_mov_b32 s%d, 1" % sMode)
    e("s_sub_u32 s%d, s%d, %d" % (sN1, sT0, SPLIT))
    e("s_add_u32 s%d, s%d, s%d" % (sTT, sN1, sT1))
    e("s_mov_b32 s%d, 0" % sSeg)
    a.label("K2_SETUP_DONE")
    e("s_mov_b32 s%d, s%d" % (sKb0a, sKb0))
    e("s_waitcnt lgkmcnt(0)")
    e("s_mov_b32 s%d, s36" % SWS)
    e("s_mov_b32 s%d, s37" % (SWS + 1))
    e("s_mov_b32 s%d, 0x%x" % (SWS + 2, WS_BYTES))
    e("s_mov_b32 s%d, 0x20000" % (SWS + 3))
    e("s_cmp_ge_u32 s%d, 4" % sW)
    e("s_cbranch_scc1 K2_AWAVE")

    O = 0
    Q = 128
    S = [192, 208]
    FR = 224
    NFR = 6
    vL16, vV, vMc, vL, vThr, vTm, vT1, vT2 = 248, 249, 250, 251, 252, 253, 254, 255
    BSEQ = list(range(6)) * 2 + list(range(5)) * 4
    assert len(BSEQ) == 32
    prev_user = {}
    for m in range(32):
        k = 1
        while BSEQ[(m - k) % 32] != BSEQ[m]:
            k += 1
        prev_user[m] = max(m - k, m - 6)
    if BPRIO:
        e("s_setprio %d" % BPRIO)
    e("v_lshlrev_b32 v%d, 4, v2" % vL16)
    e("v_add_u32 v%d, 0x10000, v%d" % (vV, vL16))
    e("s_mov_b32 s%d, %s" % (sC, f32hex(C)))
    e("s_mov_b32 s%d, %s" % (sThrAdd, f32hex(THR)))
    e("s_mov_b32 s%d, -1" % sPend)
    e("s_lshl_b32 s%d, s%d, 3" % (sT0, sH))
    e("s_add_u32 s%d, s%d, s%d" % (sT0, sT0, sI))
    e("s_lshl_b32 s%d, s%d, 2" % (sT0, sT0))
    e("s_add_u32 s%d, s%d, s%d" % (sT0, sT0, sW))
    e("s_mul_i32 s%d, s%d, %d" % (sPart, sT0, PART_WAVE))
    e("s_add_u32 s%d, s%d, 0x%x" % (sPart, sPart, WS_PART))
    e("s_lshl_b32 s%d, s%d, 7" % (sFlag, sT0))
    e("s_add_u32 s%d, s%d, 0x%x" % (sFlag, sFlag, WS_FLAG))
    e("s_mov_b32 s%d, 0" % sT)
    e("s_mov_b32 s%d, 1" % sSpin)

    def load_q():
        e("s_lshl_b32 s%d, s%d, 6" % (sT0, sH))
        e("s_lshl_b32 s%d, s%d, 2" % (sT1, sQb))
        e("s_add_u32 s%d, s%d, s%d" % (sJw, sT1, sW))
        e("s_add_u32 s%d, s%d, s%d" % (sT0, sT0, sJw))
        e("s_lshl_b32 s%d, s%d, 14" % (sT0, sT0))
        e("s_add_u32 s%d, s%d, 0x%x" % (sT0, sT0, WS_QB))
        for s in range(16):
            if s and s % 4 == 0:
                e("s_add_u32 s%d, s%d, 4096" % (sT0, sT0))
            e("buffer_load_dwordx4 %s, v%d, %s, s%d offen offset:%d" % (vr(Q + 4 * s, 4), vL16, WSR, sT0, (s % 4) * 1024))

    load_q()
    a.label("K2_SEG")
    for r in range(128):
        e("v_mov_b32 v%d, 0" % (O + r))
    e("v_mov_b32 v%d, 0" % vL)
    e("v_mov_b32 v%d, %s" % (vMc, f32hex(-1e30 * C)))
    e("s_sub_u32 s%d, s%d, 1" % (sT0, sKb1))
    e("s_min_u32 s%d, s%d, s%d" % (sEnd, sT0, sJw))
    e("s_mov_b32 s%d, s%d" % (sJ, sKb0))
    e("s_cmp_eq_u32 s%d, 0" % sSpin)
    e("s_cbranch_scc1 K2_NOBAR")
    e("s_barrier")
    e("s_mov_b32 s%d, 0" % sSpin)
    e("s_waitcnt vmcnt(0)")
    a.label("K2_NOBAR")
    e("s_waitcnt vmcnt(33) lgkmcnt(0)")
    stamp(a, 1)
    stamp(a, 5, real=True)
    if STAMP:
        e("s_waitcnt lgkmcnt(0)")

    def fr(m):
        return vr(FR + 4 * BSEQ[m % 32], 4)

    def qk_mfma(s, sb, f):
        return "v_mfma_f32_32x32x16_bf16 %s, %s, %s, %s" % (
            vr(S[sb], 16), f, vr(Q + 4 * s, 4), "0" if s == 0 else vr(S[sb], 16))

    def pv_mfma(n, sb, f):
        db, t = n >> 1, n & 1
        return "v_mfma_f32_32x32x16_bf16 %s, %s, %s, %s" % (
            vr(O + 16 * db, 16), f, vr(S[sb] + 4 * t, 4), vr(O + 16 * db, 16))

    def rdK(f, slot, chunk):
        return "ds_read_b128 %s, v%d offset:%d" % (f, vL16, slot * 16384 + chunk * 1024)

    def rdV(f, slot, chunk):
        return "ds_read_b128 %s, v%d offset:%d" % (f, vV, slot * 16384 + chunk * 1024)

    def softmax_ops(sb):
        b = S[sb]
        ops = []
        for i in range(16 + 2):
            if i < 16:
                ops.append("v_exp_f32 v%d, v%d" % (b + i, b + i))
            k = i - 2
            if 0 <= k < 16:
                ops.append("v_add_f32 v%d, v%d, v%d" % (vL, vL, b + k))
                if k & 1:
                    ops.append("v_cvt_pk_bf16_f32 v%d, v%d, v%d" % (b + (k >> 1), b + k - 1, b + k))
        return ops

    def fma_ops(sb):
        b = S[sb]
        return ["v_fma_f32 v%d, v%d, s%d, -v%d" % (b + i, b + i, sC, vMc) for i in range(16)]

    def max_ops(sb):
        b = S[sb]
        ops = ["v_max3_f32 v%d, v%d, v%d, v%d" % (vTm, b, b + 1, b + 2)]
        for k in range(3, 15, 2):
            ops.append("v_max3_f32 v%d, v%d, v%d, v%d" % (vTm, vTm, b + k, b + k + 1))
        ops.append("v_max_f32 v%d, v%d, v%d" % (vTm, vTm, b + 15))
        ops.append("v_cmp_lt_f32 vcc, s%d, v%d" % (sThrAdd, vTm))
        return ops

    def fmamax_ops(sb):
        f = fma_ops(sb)
        m = max_ops(sb)
        ops = f[0:4] + [m[0]]
        for k in range(6):
            ops += f[4 + 2 * k:6 + 2 * k] + [m[1 + k]]
        ops += m[7:]
        return ops

    def slow_path(sb, lab):
        pass

    def emit_slow(sb, lab, back):
        a.label(lab)
        b = S[sb]
        nomask = a.newlabel("K2_NOMASK")
        ret = a.newlabel("K2_SLOWRET")
        resc = a.newlabel("K2_RESC")
        e("s_cmp_lg_u32 s%d, s%d" % (sJ, sJw))
        e("s_cbranch_scc1 %s" % nomask)
        e("v_bfe_u32 v%d, v%d, 4, 5" % (vT2, vL16))
        e("v_lshrrev_b32 v%d, 9, v%d" % (vT1, vL16))
        e("v_lshlrev_b32 v%d, 2, v%d" % (vT1, vT1))
        e("v_sub_u32 v%d, v%d, v%d" % (vT2, vT2, vT1))
        e("v_mov_b32 v%d, %s" % (vT1, f32hex(-1e30)))
        for i in range(0, 16, 2):
            for j in (0, 1):
                kk = 8 * ((i + j) >> 2) + ((i + j) & 3)
                e("v_cmp_gt_i32 s[%d:%d], %d, v%d" % (40 + 2 * j, 41 + 2 * j, kk, vT2))
            e("s_nop 0")
            for j in (0, 1):
                e("v_cndmask_b32 v%d, v%d, v%d, s[%d:%d]" % (b + i + j, b + i + j, vT1, 40 + 2 * j, 41 + 2 * j))
        a.label(nomask)
        for op in max_ops(sb):
            e(op)
        e("s_cmp_lg_u32 s%d, 0" % sInit)
        e("s_cbranch_scc1 %s" % resc)
        e("s_cbranch_vccz %s" % ret)
        a.label(resc)
        e("v_mov_b32 v%d, v%d" % (vT1, vTm))
        e("s_nop 1")
        e("v_permlane32_swap_b32 v%d, v%d" % (vTm, vT1))
        e("s_nop 1")
        e("v_max_f32 v%d, v%d, v%d" % (vTm, vTm, vT1))
        noclamp = a.newlabel("K2_NOCLAMP")
        e("s_cbranch_scc1 %s" % noclamp)
        e("v_max_f32 v%d, 0, v%d" % (vTm, vTm))
        e("v_sub_f32 v%d, 0, v%d" % (vT2, vTm))
        e("v_exp_f32 v%d, v%d" % (vT2, vT2))
        e("s_nop 7")
        e("v_mul_f32 v%d, v%d, v%d" % (vL, vL, vT2))
        for r in range(128):
            e("v_mul_f32 v%d, v%d, v%d" % (O + r, O + r, vT2))
        a.label(noclamp)
        e("v_add_f32 v%d, v%d, v%d" % (vMc, vMc, vTm))
        for i in range(16):
            e("v_sub_f32 v%d, v%d, v%d" % (b + i, b + i, vTm))
        e("s_mov_b32 s%d, 0" % sInit)
        a.label(ret)
        e("s_nop 1")
        e("s_setpc_b64 s[38:39]")

    def call_slow(sb, back):
        pass

    e("s_and_b32 s%d, s%d, 3" % (sT0, sT))
    for ph in range(1, 4):
        e("s_cmp_eq_u32 s%d, %d" % (sT0, ph))
        e("s_cbranch_scc1 K2_PRE%d" % ph)
    head_reads = [m for m in range(32) if prev_user[m] < 0]
    for ph in range(4):
        a.label("K2_PRE%d" % ph)
        cur = ph & 1
        e("s_cmp_lt_i32 s%d, s%d" % (sEnd, sKb0))
        e("s_cbranch_scc1 K2_STEP%d" % ph)
        for s in range(5):
            e(rdK(vr(FR + 4 * s, 4), ph, s))
        for s in range(16):
            e("s_waitcnt lgkmcnt(%d)" % min(4, 15 - s))
            e(qk_mfma(s, cur, vr(FR + 4 * (s % 6), 4)))
            if s + 5 < 16:
                e(rdK(vr(FR + 4 * ((s + 5) % 6), 4), ph, s + 5))
        for m in head_reads:
            e(rdK(fr(m), (ph + 1) & 3, m))
        e("v_mov_b32 v%d, 0" % vMc)
        e("s_mov_b32 s%d, 1" % sInit)
        e("s_nop 7")
        for f in fma_ops(cur):
            e(f)
        e("s_call_b64 s[38:39], K2_SLOW%d" % cur)
        e("s_branch K2_STEP%d" % ph)

    for ph in range(4):
        cur, nxt = ph & 1, 1 - (ph & 1)
        kslot, vslot, k2slot = (ph + 1) & 3, ph, (ph + 2) & 3
        a.label("K2_STEP%d" % ph)
        e("s_cmp_ge_u32 s%d, s%d" % (sJ, sKb1))
        e("s_cbranch_scc1 K2_SEG_END")
        e("s_cmp_eq_u32 s%d, s%d" % (sJ, sPend))
        e("s_cbranch_scc1 K2_FLAG%d" % ph)
        a.label("K2_FLAGBACK%d" % ph)
        e("s_barrier")
        e("s_cmp_ge_i32 s%d, s%d" % (sJ, sEnd))
        e("s_cbranch_scc1 K2_LAST%d" % ph)
        def rdn(m):
            if m < 16:
                return rdK(fr(m), kslot, m)
            if m < 32:
                return rdV(fr(m), vslot, m - 16)
            return rdK(fr(m), k2slot, m - 32)
        after = {n: [] for n in range(32)}
        for m in range(32):
            pu = prev_user[m]
            if pu >= 0:
                after[pu].append(m)
            else:
                after[pu + 32].append(m + 32)
        fx = softmax_ops(cur)
        fy = fmamax_ops(nxt)

        def share(lst, g, ng):
            return lst[(g * len(lst)) // ng:((g + 1) * len(lst)) // ng]
        issued = list(head_reads)
        for n in range(32):
            if n % 2 == 0:
                last = max(issued.index(n), issued.index(n + 1))
                e("s_waitcnt lgkmcnt(%d)" % (len(issued) - 1 - last))
            e(qk_mfma(n, nxt, fr(n)) if n < 16 else pv_mfma(n - 16, cur, fr(n)))
            for m in after[n]:
                e(rdn(m))
                issued.append(m)
            if n < 15:
                for f in share(fx, n, 15):
                    e(f)
            if 20 <= n < 31:
                for f in share(fy, n - 20, 11):
                    e(f)
            if n == 29:
                e("s_add_u32 s%d, s%d, 1" % (sJ, sJ))
                e("s_add_u32 s%d, s%d, 1" % (sT, sT))
            if n == 30:
                e("s_cmp_eq_u32 s%d, s%d" % (sJ, sJw))
        e("s_cbranch_vccnz K2_TOSLOW%d" % ph)
        e("s_cbranch_scc1 K2_TOSLOW%d" % ph)
        if ph == 3:
            e("s_branch K2_STEP0")
    for ph in range(4):
        cur, nxt = ph & 1, 1 - (ph & 1)
        a.label("K2_TOSLOW%d" % ph)
        e("s_call_b64 s[38:39], K2_SLOW%d" % nxt)
        e("s_branch K2_STEP%d" % ((ph + 1) & 3))
        a.label("K2_LAST%d" % ph)
        e("s_cmp_gt_i32 s%d, s%d" % (sJ, sEnd))
        e("s_cbranch_scc1 K2_IDLE%d" % ph)
        e("s_waitcnt lgkmcnt(0)")
        for n in range(5):
            e(rdV(vr(FR + 4 * n, 4), ph, n))
        for f in softmax_ops(cur):
            e(f)
        e("s_nop 1")
        for n in range(16):
            e("s_waitcnt lgkmcnt(%d)" % min(4, 15 - n))
            e(pv_mfma(n, cur, vr(FR + 4 * (n % 6), 4)))
            if n + 5 < 16:
                e(rdV(vr(FR + 4 * ((n + 5) % 6), 4), ph, n + 5))
        a.label("K2_IDLE%d" % ph)
        e("s_add_u32 s%d, s%d, 1" % (sJ, sJ))
        e("s_add_u32 s%d, s%d, 1" % (sT, sT))
        e("s_branch K2_STEP%d" % ((ph + 1) & 3))
    for sb in range(2):
        emit_slow(sb, "K2_SLOW%d" % sb, None)
    for ph in range(4):
        a.label("K2_FLAG%d" % ph)
        e("s_waitcnt vmcnt(0)")
        e("v_mov_b32 v%d, 1" % vT1)
        e("v_mov_b32 v%d, 0" % vT2)
        e("s_mov_b64 exec, 1")
        e("buffer_store_dword v%d, v%d, %s, s%d offen sc1" % (vT1, vT2, WSR, sFlag))
        e("s_mov_b64 exec, -1")
        e("s_mov_b32 s%d, -1" % sPend)
        e("s_branch K2_FLAGBACK%d" % ph)

    a.label("K2_SEG_END")
    stamp(a, 2)
    stamp(a, 6, real=True)
    e("s_nop 7")
    e("s_nop 7")
    e("v_mov_b32 v%d, v%d" % (vT1, vL))
    e("s_nop 1")
    e("v_permlane32_swap_b32 v%d, v%d" % (vL, vT1))
    e("s_nop 1")
    e("v_add_f32 v%d, v%d, v%d" % (vL, vL, vT1))
    e("s_cmp_eq_u32 s%d, 1" % sMode)
    e("s_cbranch_scc1 K2_PUBLISH")
    e("v_bfe_u32 v%d, v%d, 4, 5" % (vT1, vL16))
    e("v_lshlrev_b32 v%d, 2, v%d" % (vT1, vT1))
    e("s_lshl_b32 s%d, s%d, 7" % (sT0, sJw))
    e("s_add_u32 s%d, s%d, 0x%x" % (sT0, sT0, WS_G + 8192))
    e("buffer_load_dword v%d, v%d, %s, s%d offen" % (vThr, vT1, WSR, sT0))
    e("s_mul_i32 s%d, s%d, 288" % (sT3, sJw))
    e("s_lshl_b32 s%d, s%d, 4" % (sT1, sH))
    e("s_add_u32 s%d, s%d, s%d" % (sT3, sT3, sT1))
    e("s_lshl_b32 s%d, s%d, 10" % (sT3, sT3))
    e("s_add_u32 s%d, s%d, 0x%x" % (sT3, sT3, WS_CTX))
    e("s_cmp_eq_u32 s%d, 2" % sMode)
    e("s_cbranch_scc1 K2_COMBINE")
    e("v_rcp_f32 v%d, v%d" % (vT2, vL))
    e("s_waitcnt vmcnt(0)")
    e("v_mul_f32 v%d, v%d, v%d" % (vT2, vT2, vThr))

    def store_ctx(db):
        tb = S[0] + 8 * (db & 3)
        for r in range(8):
            e("v_cvt_pk_bf16_f32 v%d, v%d, v%d" % (tb + r, O + 16 * db + 2 * r, O + 16 * db + 2 * r + 1))
        for t in range(2):
            e("buffer_store_dwordx4 %s, v%d, %s, s%d offen offset:%d" % (
                vr(tb + 4 * t, 4), vL16, WSR, sT3, ((db & 1) * 2 + t) * 1024))
        if db & 1:
            e("s_add_u32 s%d, s%d, 4096" % (sT3, sT3))

    for db in range(8):
        for r in range(16):
            e("v_mul_f32 v%d, v%d, v%d" % (O + 16 * db + r, O + 16 * db + r, vT2))
        store_ctx(db)
    a.label("K2_NEXT")
    stamp(a, 3)
    e("s_branch K2_DONE")

    a.label("K2_PUBLISH")
    e("s_mov_b32 s%d, s%d" % (sQb, sI))
    e("s_mov_b32 s%d, 0" % sKb0)
    e("s_lshl_b32 s%d, s%d, 2" % (sKb1, sI))
    e("s_add_u32 s%d, s%d, 4" % (sKb1, sKb1))
    e("s_mov_b32 s%d, 0" % sMode)
    load_q()
    e("s_mov_b32 s%d, s%d" % (sT0, sPart))
    for c in range(32):
        if c and c % 4 == 0:
            e("s_add_u32 s%d, s%d, 4096" % (sT0, sT0))
        e("buffer_store_dwordx4 %s, v%d, %s, s%d offen offset:%d sc1" % (vr(O + 4 * c, 4), vL16, WSR, sT0, (c % 4) * 1024))
    e("s_add_u32 s%d, s%d, 4096" % (sT0, sT0))
    e("v_mov_b32 v%d, v%d" % (S[0], vMc))
    e("v_mov_b32 v%d, v%d" % (S[0] + 1, vL))
    e("v_mov_b32 v%d, 0" % (S[0] + 2))
    e("v_mov_b32 v%d, 0" % (S[0] + 3))
    e("buffer_store_dwordx4 %s, v%d, %s, s%d offen sc1" % (vr(S[0], 4), vL16, WSR, sT0))
    e("s_mov_b32 s%d, 2" % sPend)
    e("s_nop 1")
    e("s_branch K2_SEG")

    a.label("K2_COMBINE")
    e("v_mov_b32 v%d, 0" % vT2)
    e("s_mov_b32 s%d, 0x40000" % sSpin)
    a.label("K2_POLL")
    e("buffer_load_dword v%d, v%d, %s, s%d offen sc1" % (vT1, vT2, WSR, sFlag))
    e("s_waitcnt vmcnt(0)")
    e("v_readfirstlane_b32 s%d, v%d" % (sT0, vT1))
    e("s_cmp_eq_u32 s%d, 1" % sT0)
    e("s_cbranch_scc1 K2_POLL_OK")
    e("s_sleep 2")
    e("s_sub_u32 s%d, s%d, 1" % (sSpin, sSpin))
    e("s_cmp_lg_u32 s%d, 0" % sSpin)
    e("s_cbranch_scc1 K2_POLL")
    a.label("K2_POLL_OK")
    e("s_waitcnt lgkmcnt(0)")
    e("s_add_u32 s%d, s%d, 32768" % (sT0, sPart))
    e("buffer_load_dwordx4 %s, v%d, %s, s%d offen sc1" % (vr(FR, 4), vL16, WSR, sT0))
    e("s_mov_b32 s%d, s%d" % (sT0, sPart))

    def load_half(hf):
        for c in range(16):
            if c and c % 4 == 0:
                e("s_add_u32 s%d, s%d, 4096" % (sT0, sT0))
            e("buffer_load_dwordx4 %s, v%d, %s, s%d offen offset:%d sc1" % (vr(Q + 4 * c, 4), vL16, WSR, sT0, (c % 4) * 1024))
        e("s_add_u32 s%d, s%d, 4096" % (sT0, sT0))
    load_half(0)
    e("s_waitcnt vmcnt(16)")
    e("v_max_f32 v%d, v%d, v%d" % (vTm, vMc, FR))
    e("v_sub_f32 v%d, v%d, v%d" % (vT1, vMc, vTm))
    e("v_sub_f32 v%d, v%d, v%d" % (vT2, FR, vTm))
    e("v_exp_f32 v%d, v%d" % (vT1, vT1))
    e("v_exp_f32 v%d, v%d" % (vT2, vT2))
    e("s_nop 0")
    e("v_mul_f32 v%d, v%d, v%d" % (vL, vL, vT1))
    e("v_fma_f32 v%d, v%d, v%d, v%d" % (vL, FR + 1, vT2, vL))
    e("v_rcp_f32 v%d, v%d" % (vL, vL))
    e("s_nop 0")
    e("v_mul_f32 v%d, v%d, v%d" % (vL, vL, vThr))
    e("v_mul_f32 v%d, v%d, v%d" % (vT1, vT1, vL))
    e("v_mul_f32 v%d, v%d, v%d" % (vT2, vT2, vL))
    for hf in range(2):
        e("s_waitcnt vmcnt(0)")
        for r in range(64):
            e("v_mul_f32 v%d, v%d, v%d" % (O + 64 * hf + r, O + 64 * hf + r, vT1))
            e("v_fma_f32 v%d, v%d, v%d, v%d" % (O + 64 * hf + r, Q + r, vT2, O + 64 * hf + r))
        if hf == 0:
            load_half(1)
        for db in range(4 * hf, 4 * hf + 4):
            store_ctx(db)
    e("s_branch K2_NEXT")

    a.label("K2_DONE")
    if STAMP:
        e("s_waitcnt vmcnt(0)")
    stamp(a, 4); stamp(a, 7)
    stamp(a, 9, real=True)
    stamp_dump(a, 10, SWS, sW, sT0, kidx=1, wave=int(os.environ.get("K2WAVE", "3")))
    e("s_endpgm")

    a.label("K2_AWAVE")
    AO, NM, AQ = 0, 16, 32
    AS = [40, 56]
    KF = [72, 80]
    VF = 88
    aL16, aDma, aK, aV, aTm, aT1, aT2, aG, aPF, aPFs, aPFm, aPFb, aPFd, aDm2 = range(96, 110)
    sWa, sQ32, sA, sKVA, sThr, sKsrc, sVsrc, sAsrc, sWoffA = 40, 41, 42, 43, 44, 45, 46, 47, 48
    sKt, sVt = 49, 50
    e("s_sub_u32 s%d, s%d, 4" % (sWa, sW))
    e("v_lshlrev_b32 v%d, 4, v2" % aL16)
    e("s_lshl_b32 s%d, s%d, 12" % (sWoff, sWa))
    e("s_lshl_b32 s%d, s%d, 11" % (sWoffA, sWa))
    e("v_add_u32 v%d, s%d, v%d" % (aDma, sWoff, aL16))
    e("v_add_u32 v%d, s%d, v%d" % (aDm2, sWoffA, aL16))
    e("v_add_u32 v%d, 0x%x, v%d" % (aK, LDS_A, aL16))
    e("v_lshrrev_b32 v3, 5, v2")
    e("v_bfe_u32 v4, v2, 2, 2")
    e("v_lshl_add_u32 v3, v3, 2, v4")
    e("v_lshlrev_b32 v3, 6, v3")
    e("v_bfe_u32 v4, v2, 4, 1")
    e("v_and_b32 v5, 1, v2")
    e("v_lshl_add_u32 v4, v4, 1, v5")
    e("v_bfe_u32 v5, v2, 1, 1")
    e("v_lshl_add_u32 v4, v4, 1, v5")
    e("v_lshl_add_u32 v3, v4, 3, v3")
    e("v_add_u32 v%d, 0x%x, v3" % (aV, LDS_A + 2048))
    e("s_lshr_b32 s%d, s2, 4" % sT0)
    e("s_lshl_b32 s%d, s%d, 2" % (sQ32, sT0))
    e("s_add_u32 s%d, s%d, s%d" % (sQ32, sQ32, sWa))
    e("s_lshl_b32 s%d, s%d, 18" % (sKVA, sH))
    e("s_add_u32 s%d, s%d, 0x%x" % (sKVA, sKVA, WS_KVA))
    e("s_mov_b32 s%d, %s" % (sThr, f32hex(THR)))
    e("v_and_b32 v3, 7, v2")
    e("s_lshl_b32 s%d, s%d, 5" % (sT1, sI))
    e("s_lshl_b32 s%d, s%d, 3" % (sT2, sWa))
    e("s_add_u32 s%d, s%d, s%d" % (sT1, sT1, sT2))
    e("v_add_u32 v3, s%d, v3" % sT1)
    e("v_lshlrev_b32 v3, 7, v3")
    e("s_mul_i32 s%d, s%d, %d" % (sT1, sRole, SPLIT))
    e("s_sub_u32 s%d, %d, s%d" % (sT1, SPLIT, sT1))
    e("s_lshl_b32 s%d, s%d, 15" % (sT1, sT1))
    e("v_add_u32 v3, s%d, v3" % sT1)
    e("s_lshl_b32 s%d, s%d, 2" % (sT1, sT0))
    e("s_add_u32 s%d, s%d, s%d" % (sT1, sT1, sWa))
    e("s_lshl_b32 s%d, s%d, 7" % (sT1, sT1))
    e("v_mov_b32 v4, s%d" % sT1)
    e("v_and_b32 v5, 8, v2")
    e("v_cmp_ne_u32 vcc, 0, v5")
    e("s_nop 1")
    e("v_cndmask_b32 v%d, v3, v4, vcc" % aPF)
    e("v_mov_b32 v3, 0x8000"); e("v_mov_b32 v4, 0x2000")
    e("v_cndmask_b32 v%d, v3, v4, vcc" % aPFs)
    e("v_mov_b32 v3, 0x1fffff"); e("v_mov_b32 v4, 0x3ffff")
    e("v_cndmask_b32 v%d, v3, v4, vcc" % aPFm)
    e("v_mov_b32 v3, s%d" % sKV); e("v_mov_b32 v4, s%d" % sKVA)
    e("v_cndmask_b32 v%d, v3, v4, vcc" % aPFb)

    def pf():
        return ["v_add_u32 v%d, v%d, v%d" % (aT2, aPFb, aPF),
                "v_add_u32 v%d, v%d, v%d" % (aPF, aPF, aPFs),
                "buffer_load_dword v%d, v%d, %s, 0 offen" % (aPFd, aT2, WSR),
                "v_and_b32 v%d, v%d, v%d" % (aPF, aPF, aPFm)]

    for _ in range(PFD):
        for f in pf():
            e(f)

    def dmaB(isV, slot):
        sSrc, sIdx = (sVsrc, sVt) if isV else (sKsrc, sKt)
        base = 0x10000 if isV else 0
        f = []
        if slot is None:
            f.append("s_and_b32 s%d, s%d, 3" % (sT0, sIdx))
            f.append("s_lshl_b32 s%d, s%d, 14" % (sT0, sT0))
            f.append("s_add_u32 s%d, s%d, s%d" % (sT0, sT0, sWoff))
            f.append("s_add_u32 m0, s%d, 0x%x" % (sT0, base))
        else:
            f.append("s_add_u32 m0, s%d, 0x%x" % (sWoff, base + slot * 16384))
        f.append("s_cmp_lt_u32 s%d, s%d" % (sIdx, sTT))
        f.append("s_cselect_b32 s%d, s%d, 0x7ff00000" % (sT1, sSrc))
        for p in range(4):
            f.append("buffer_load_dwordx4 v%d, %s, s%d offen offset:%d lds" % (aDma, WSR, sT1, p * 1024))
        f.append("s_add_u32 s%d, s%d, 1" % (sIdx, sIdx))
        f.append("s_add_u32 s%d, s%d, 0x8000" % (sSrc, sSrc))
        f.append("s_add_u32 s%d, s%d, 0x%x" % (sT1, sKV, 0x4000 if isV else 0))
        f.append("s_cmp_eq_u32 s%d, s%d" % (sIdx, sN1))
        f.append("s_cselect_b32 s%d, s%d, s%d" % (sSrc, sT1, sSrc))
        return f

    def dmaA(slot, oob=False):
        f = ["s_add_u32 m0, s%d, 0x%x" % (sWoffA, LDS_A + slot * 8192)]
        f.append("s_cmp_lt_u32 s%d, s%d" % (sAsrc, sA))
        f.append("s_cselect_b32 s%d, s%d, 0x7ff00000" % (sT1, sAsrc))
        for p in range(2):
            f.append("buffer_load_dwordx4 v%d, %s, s%d offen offset:%d lds" % (aDm2, WSR, sT1, p * 1024))
        f.append("s_add_u32 s%d, s%d, 0x2000" % (sAsrc, sAsrc))
        return f

    e("s_lshl_b32 s%d, s%d, 15" % (sKsrc, sKb0a))
    e("s_add_u32 s%d, s%d, s%d" % (sKsrc, sKsrc, sKV))
    e("s_add_u32 s%d, s%d, 0x4000" % (sVsrc, sKsrc))
    e("s_mov_b32 s%d, 0" % sKt)
    e("s_mov_b32 s%d, 0" % sVt)
    e("s_mov_b32 s%d, s%d" % (sAsrc, sKVA))
    e("s_add_u32 s%d, s%d, 0x40000" % (sA, sKVA))
    e("s_lshl_b32 s%d, s%d, 6" % (sT0, sH))
    e("s_add_u32 s%d, s%d, s%d" % (sT0, sT0, sQ32))
    e("s_lshl_b32 s%d, s%d, 11" % (sT0, sT0))
    e("s_add_u32 s%d, s%d, 0x%x" % (sT0, sT0, WS_QA))
    for s in range(2):
        e("buffer_load_dwordx4 %s, v%d, %s, s%d offen offset:%d" % (vr(AQ + 4 * s, 4), aL16, WSR, sT0, s * 1024))
    e("v_and_b32 v3, 31, v2")
    e("v_lshlrev_b32 v3, 2, v3")
    e("s_lshl_b32 s%d, s%d, 7" % (sT0, sQ32))
    e("s_add_u32 s%d, s%d, 0x%x" % (sT0, sT0, WS_G))
    e("buffer_load_dword v%d, v3, %s, s%d offen" % (aG, WSR, sT0))
    pro = dmaB(0, 0) + dmaA(0)
    pro += dmaB(0, 1) + dmaA(1) + dmaB(1, 0)
    pro += ["s_nop 0"] * 0
    pro2 = dmaB(0, 2) + dmaA(2) + dmaB(1, 1)
    for f in pro + pro2:
        e(f)
    for r in range(16):
        e("v_mov_b32 v%d, 0" % (AO + r))

    def kread(kf, slot, tile):
        return ["ds_read_b128 %s, v%d offset:%d" % (vr(KF[kf] + 4 * s, 4), aK, slot * 8192 + tile * 4096 + s * 1024) for s in range(2)]

    def vread(slot, tile):
        return ["ds_read_b64_tr_b16 %s, v%d offset:%d" % (vr(VF + 4 * t + 2 * u, 2), aV, slot * 8192 + tile * 4096 + t * 1024 + u * 512)
                for t in range(2) for u in range(2)]

    def qk(sb, kf, cz=False):
        return ["v_mfma_f32_32x32x16_bf16 %s, %s, %s, %s" % (vr(AS[sb], 16), vr(KF[kf], 4), vr(AQ, 4), "0" if cz else vr(NM, 16)),
                "v_mfma_f32_32x32x16_bf16 %s, %s, %s, %s" % (vr(AS[sb], 16), vr(KF[kf] + 4, 4), vr(AQ + 4, 4), vr(AS[sb], 16))]

    def amaxops(sb):
        b = AS[sb]
        ops = ["v_max3_f32 v%d, v%d, v%d, v%d" % (aTm, b, b + 1, b + 2)]
        for k in range(3, 15, 2):
            ops.append("v_max3_f32 v%d, v%d, v%d, v%d" % (aTm, aTm, b + k, b + k + 1))
        ops.append("v_max_f32 v%d, v%d, v%d" % (aTm, aTm, b + 15))
        return ops

    def xhalf_max():
        e("v_mov_b32 v%d, v%d" % (aT1, aTm))
        e("s_nop 1")
        e("v_permlane32_swap_b32 v%d, v%d" % (aTm, aT1))
        e("s_nop 1")
        e("v_max_f32 v%d, v%d, v%d" % (aTm, aTm, aT1))

    aslow = []
    sAi = 51
    e("s_mov_b32 s%d, 0" % sAi)
    e("s_mov_b32 s52, 0x7ff00000")
    a.label("K2A_LOOP")
    for ph in range(4):
        if ph == 0:
            e("s_waitcnt vmcnt(14) lgkmcnt(0)")
        elif ph == 1:
            e("s_waitcnt vmcnt(15) lgkmcnt(0)")
        else:
            e("s_waitcnt vmcnt(16) lgkmcnt(0)")
        e("s_barrier")
        dm = dmaB(0, (ph + 3) & 3) + dmaA((ph + 3) & 3) + dmaB(1, (ph + 2) & 3) + pf()
        if ph == 0:
            lab = a.newlabel("K2A_NOINIT")
            e("s_cmp_lg_u32 s%d, 0" % sAi)
            e("s_cbranch_scc1 %s" % lab)
            for f in kread(0, 0, 0) + kread(1, 0, 1):
                e(f)
            e("s_waitcnt lgkmcnt(2)")
            for m in qk(0, 0, cz=True):
                e(m)
            e("s_nop 7")
            e("s_nop 7")
            for op in amaxops(0):
                e(op)
            xhalf_max()
            for r in range(16):
                e("v_sub_f32 v%d, v%d, v%d" % (AS[0] + r, AS[0] + r, aTm))
                e("v_sub_f32 v%d, 0, v%d" % (NM + r, aTm))
            e("s_nop 1")
            a.label(lab)
        half = (len(dm) + 1) // 2
        if os.environ.get("NOA"):
            for f in dm:
                e(f)
            continue
        if os.environ.get("NODMA"):
            dm = [f.replace("s%d offen offset" % sT1, "s52 offen offset") for f in dm]
        for tl in range(2):
            cur, nxt = tl, 1 - tl
            b = AS[cur]
            dmi = dm[:half] if tl == 0 else dm[half:]
            e("s_waitcnt lgkmcnt(0)")
            m = qk(nxt, nxt)
            e(m[0])
            for f in vread(ph, tl):
                e(f)
            e(m[1])
            for f in kread(cur, (ph + 1) & 3, tl):
                e(f)
            k2 = 0
            for i in range(16 + 2):
                if i < 16:
                    e("v_exp_f32 v%d, v%d" % (b + i, b + i))
                k = i - 2
                if k >= 0 and (k & 1):
                    e("v_cvt_pk_bf16_f32 v%d, v%d, v%d" % (b + (k >> 1), b + k - 1, b + k))
                tgt = ((i + 1) * len(dmi)) // 18
                while k2 < tgt:
                    e(dmi[k2]); k2 += 1
            mo = amaxops(nxt)
            e(mo[0])
            e("s_waitcnt lgkmcnt(2)")
            e("v_mfma_f32_32x32x16_bf16 %s, %s, %s, %s" % (vr(AO, 16), vr(VF, 4), vr(b, 4), vr(AO, 16)))
            for op in mo[1:5]:
                e(op)
            e("v_mfma_f32_32x32x16_bf16 %s, %s, %s, %s" % (vr(AO, 16), vr(VF + 4, 4), vr(b + 4, 4), vr(AO, 16)))
            for op in mo[5:]:
                e(op)
            e("v_cmp_lt_f32 vcc, s%d, v%d" % (sThr, aTm))
            e("s_cbranch_vccnz K2A_SLOW%d_%d" % (ph, tl))
            a.label("K2A_BACK%d_%d" % (ph, tl))
            aslow.append((ph, tl, nxt))
    e("s_add_u32 s%d, s%d, 4" % (sAi, sAi))
    e("s_cmp_lt_u32 s%d, 32" % sAi)
    e("s_cbranch_scc1 K2A_LOOP")
    e("s_nop 7")
    e("s_nop 7")
    e("v_mov_b32 v%d, v%d" % (aT1, AO + 12))
    e("v_mov_b32 v%d, v%d" % (aT2, AO + 12))
    e("s_nop 1")
    e("v_permlane32_swap_b32 v%d, v%d" % (aT1, aT2))
    e("s_nop 1")
    e("v_rcp_f32 v%d, v%d" % (aT2, aT2))
    e("s_nop 0")
    e("v_mul_f32 v%d, v%d, v%d" % (aT2, aT2, aG))
    for r in range(16):
        e("v_mul_f32 v%d, v%d, v%d" % (AO + r, AO + r, aT2))
    e("s_mov_b32 exec_lo, 0")
    for r in range(12, 16):
        e("v_mov_b32 v%d, 0" % (AO + r))
    e("s_mov_b32 exec_lo, -1")
    for r in range(8):
        e("v_cvt_pk_bf16_f32 v%d, v%d, v%d" % (AS[0] + r, AO + 2 * r, AO + 2 * r + 1))
    e("s_mul_i32 s%d, s%d, 288" % (sT0, sQ32))
    e("s_lshl_b32 s%d, s%d, 1" % (sT1, sH))
    e("s_add_u32 s%d, s%d, s%d" % (sT0, sT0, sT1))
    e("s_add_u32 s%d, s%d, 256" % (sT0, sT0))
    e("s_lshl_b32 s%d, s%d, 10" % (sT0, sT0))
    e("s_add_u32 s%d, s%d, 0x%x" % (sT0, sT0, WS_CTX))
    for t in range(2):
        e("buffer_store_dwordx4 %s, v%d, %s, s%d offen offset:%d" % (vr(AS[0] + 4 * t, 4), aL16, WSR, sT0, t * 1024))
    a.label("K2A_TAIL")
    e("s_cmp_gt_u32 s%d, s%d" % (sAi, sTT))
    e("s_cbranch_scc1 K2_END")
    e("s_waitcnt vmcnt(8)")
    e("s_barrier")
    for f in dmaB(0, None) + dmaB(1, None):
        e(f)
    e("s_add_u32 s%d, s%d, 1" % (sAi, sAi))
    e("s_branch K2A_TAIL")
    for ph, tl, sb in aslow:
        a.label("K2A_SLOW%d_%d" % (ph, tl))
        e("s_nop 7")
        e("s_nop 7")
        xhalf_max()
        e("v_max_f32 v%d, 0, v%d" % (aTm, aTm))
        e("v_sub_f32 v%d, 0, v%d" % (aT1, aTm))
        e("v_exp_f32 v%d, v%d" % (aT1, aT1))
        for r in range(16):
            e("v_sub_f32 v%d, v%d, v%d" % (AS[sb] + r, AS[sb] + r, aTm))
            e("v_sub_f32 v%d, v%d, v%d" % (NM + r, NM + r, aTm))
            e("v_mul_f32 v%d, v%d, v%d" % (AO + r, AO + r, aT1))
        e("s_nop 1")
        e("s_branch K2A_BACK%d_%d" % (ph, tl))
    a.label("K2_END")
    e("s_endpgm")
    return kernel_desc(name, 256, 96, 256)
```

```python
import struct, os
from asmlib import *
from layout import *

NW = 8
DEPTH = int(os.environ.get("K3DEPTH", "10"))
LAUNCH = "; @launch kernel=k3_oproj_kernel grid=(224,1,1) block=(512,1,1) lds=%d" % max(NW * DEPTH * 2048, 4 * 7 * 4096)


def gen_k3(a, name="k3_oproj_kernel"):
    e = a.e
    NS = 288 // NW
    SWS, SWB, SWA, SO = 4, 8, 12, 16
    sW, sQt, sNt, sCtx, sWk, sLds, sCnt = 20, 21, 22, 23, 24, 25, 26
    sT0, sT1, sT2 = 27, 28, 29
    ACC = 0
    CF = 64
    WF = CF + DEPTH * 8
    vL16 = WF + 16
    vWd = vL16 + 1
    vWr = vL16 + 3
    vT = vL16 + 5
    NV = vT + 8

    a.raw(".p2align 8")
    a.label(name)
    e("s_cmp_ge_u32 s2, 224")
    e("s_cbranch_scc1 K3_END")
    stamp(a, 0)
    stamp(a, 8, real=True)
    e("s_load_dwordx2 s[36:37], s[0:1], 96")
    e("s_load_dwordx2 s[38:39], s[0:1], 64")
    e("s_load_dwordx2 s[40:41], s[0:1], 16")
    e("s_load_dwordx2 s[42:43], s[0:1], 80")
    e("v_lshrrev_b32 v1, 6, v0")
    e("v_and_b32 v2, 63, v0")
    e("v_readfirstlane_b32 s%d, v1" % sW)
    e("v_lshlrev_b32 v%d, 4, v2" % vL16)
    e("s_and_b32 s%d, s2, 7" % sT0)
    e("s_lshr_b32 s%d, s2, 3" % sT1)
    e("s_lshl_b32 s%d, s%d, 2" % (sQt, sT0))
    e("s_and_b32 s%d, s%d, 3" % (sT2, sT1))
    e("s_add_u32 s%d, s%d, s%d" % (sQt, sQt, sT2))
    e("s_lshr_b32 s%d, s%d, 2" % (sNt, sT1))
    e("v_lshrrev_b32 v3, 3, v2")
    e("v_and_b32 v4, 7, v2")
    e("v_bfe_u32 v5, v2, 4, 1")
    e("v_lshlrev_b32 v5, 2, v5")
    e("v_xor_b32 v4, v4, v5")
    e("v_lshlrev_b32 v4, 4, v4")
    e("v_mul_u32_u24 v3, 896, v3")
    e("v_add_u32 v3, v3, v4")
    e("s_lshl_b32 s%d, s%d, 7" % (sT0, sNt))
    e("v_add_u32 v%d, s%d, v3" % (vWd, sT0))
    e("v_add_u32 v%d, %d, v%d" % (vWd + 1, 8 * 896 - 1024, vWd))
    e("v_lshrrev_b32 v3, 5, v2")
    e("v_bfe_u32 v4, v2, 2, 2")
    e("v_lshl_add_u32 v3, v3, 2, v4")
    e("v_lshlrev_b32 v3, 7, v3")
    e("v_bfe_u32 v4, v2, 4, 1")
    e("v_lshl_add_u32 v3, v4, 5, v3")
    e("v_and_b32 v4, 3, v2")
    e("v_lshl_add_u32 v3, v4, 3, v3")
    e("v_bfe_u32 v4, v2, 3, 1")
    e("s_mul_i32 s%d, s%d, %d" % (sLds, sW, DEPTH * 2048))
    e("v_add_u32 v3, s%d, v3" % sLds)
    e("v_lshl_add_u32 v%d, v4, 6, v3" % vWr)
    e("v_xor_b32 v%d, 64, v%d" % (vWr + 1, vWr))
    e("s_waitcnt lgkmcnt(0)")
    for (srd, p, nb) in ((SWS, 36, WS_BYTES), (SWB, 38, NB['wob']), (SWA, 40, NB['wo']), (SO, 42, NB['out'])):
        e("s_mov_b32 s%d, s%d" % (srd, p))
        e("s_mov_b32 s%d, s%d" % (srd + 1, p + 1))
        e("s_mov_b32 s%d, 0x%x" % (srd + 2, nb))
        e("s_mov_b32 s%d, 0x20000" % (srd + 3))
    e("s_mul_i32 s%d, s%d, 576" % (sCtx, sQt))
    e("s_mul_i32 s%d, s%d, %d" % (sT0, sW, NS))
    e("s_add_u32 s%d, s%d, s%d" % (sCtx, sCtx, sT0))
    e("s_lshl_b32 s%d, s%d, 10" % (sCtx, sCtx))
    e("s_add_u32 s%d, s%d, 0x%x" % (sCtx, sCtx, WS_CTX))
    e("v_add_u32 v%d, %d, v%d" % (vT, 288 * 1024, vL16))
    e("s_mul_i32 s%d, s%d, %d" % (sWk, sW, NS * 16 * 896))

    SWC = 44
    for r in range(3):
        e("s_mov_b32 s%d, s%d" % (SWC + r, SWB + r))
    e("s_mov_b32 s%d, 0x20000" % (SWC + 3))
    sStepA, sStepB = 48, 49
    e("s_movk_i32 s%d, %d" % (sStepA, 16 * 896))
    e("s_movk_i32 s%d, %d" % (sStepB, 16 * 896))
    SW_AT = 256 - (NW - 1) * NS
    assert SW_AT % 2 == 0 and 0 <= SW_AT < NS

    sK0, sPhi, sKap, sBase = 50, 51, 52, 53
    GRP, NG = int(os.environ.get("K3GRP", "3")), int(os.environ.get("K3NG", "6"))
    e("s_mul_i32 s%d, s%d, %d" % (sK0, sW, NS))
    e("s_and_b32 s%d, s%d, 3" % (sT0, sQt))
    e("s_mul_i32 s%d, s%d, %d" % (sT0, sT0, int(os.environ.get("K3QM", "3"))))
    e("s_lshr_b32 s%d, s%d, 1" % (sT0, sT0))
    e("s_add_u32 s%d, s%d, s%d" % (sPhi, sT0, sNt))
    for _ in range(2):
        e("s_sub_u32 s%d, s%d, %d" % (sT0, sPhi, NG))
        e("s_cmp_ge_u32 s%d, %d" % (sPhi, NG))
        e("s_cselect_b32 s%d, s%d, s%d" % (sPhi, sT0, sPhi))
    if os.environ.get("K3NOROT"):
        e("s_mov_b32 s%d, 0" % sPhi)
    e("s_mul_i32 s%d, s%d, 576" % (sBase, sQt))
    e("s_lshl_b32 s%d, s%d, 10" % (sBase, sBase))
    e("s_add_u32 s%d, s%d, 0x%x" % (sBase, sBase, WS_CTX))

    def issue(slot, n):
        f = []
        SB = GRP * NG
        sb, r = n // SB, n % SB
        if r % GRP == 0:
            i = r // GRP
            f.append("s_add_u32 s%d, s%d, %d" % (sKap, sPhi, i))
            f.append("s_sub_u32 s%d, s%d, %d" % (sT0, sKap, NG))
            f.append("s_cmp_ge_u32 s%d, %d" % (sKap, NG))
            f.append("s_cselect_b32 s%d, s%d, s%d" % (sKap, sT0, sKap))
            f.append("s_mul_i32 s%d, s%d, %d" % (sKap, sKap, GRP))
            f.append("s_add_u32 s%d, s%d, s%d" % (sKap, sKap, sK0))
            if sb:
                f.append("s_add_u32 s%d, s%d, %d" % (sKap, sKap, sb * SB))
        else:
            f.append("s_add_u32 s%d, s%d, 1" % (sKap, sKap))
        f.append("s_lshl_b32 s%d, s%d, 10" % (sCtx, sKap))
        f.append("s_add_u32 s%d, s%d, s%d" % (sCtx, sCtx, sBase))
        f.append("buffer_load_dwordx4 %s, v%d, %s, s%d offen" % (vr(CF + slot * 8, 4), vL16, sr(SWS, 4), sCtx))
        f.append("s_add_u32 m0, s%d, %d" % (sLds, slot * 2048))
        f.append("buffer_load_dwordx4 %s, v%d, %s, s%d offen" % (vr(CF + slot * 8 + 4, 4), vT, sr(SWS, 4), sCtx))
        f.append("s_sub_u32 s%d, s%d, 256" % (sT0, sKap))
        f.append("s_and_b32 s%d, s%d, 1" % (sT1, sT0))
        f.append("s_mul_i32 s%d, s%d, 7" % (sT0, sT0))
        f.append("s_add_u32 s%d, s%d, s%d" % (sT0, sT0, sT1))
        f.append("s_lshl_b32 s%d, s%d, 3" % (sT1, sKap))
        f.append("s_cmp_ge_u32 s%d, 256" % sKap)
        f.append("s_cselect_b32 s%d, s%d, s%d" % (sT0, sT0, sT1))
        f.append("s_cselect_b32 s%d, s%d, s%d" % (SWC, SWA, SWB))
        f.append("s_cselect_b32 s%d, s%d, s%d" % (SWC + 1, SWA + 1, SWB + 1))
        f.append("s_cselect_b32 s%d, s%d, s%d" % (SWC + 2, SWA + 2, SWB + 2))
        f.append("s_mul_i32 s%d, s%d, 1792" % (sWk, sT0))
        f.append("buffer_load_dwordx4 v%d, %s, s%d offen lds" % (vWd, sr(SWC, 4), sWk))
        f.append("buffer_load_dwordx4 v%d, %s, s%d offen offset:1024 lds" % (vWd + 1, sr(SWC, 4), sWk))
        return f

    def wread(slot, ws):
        return ["ds_read_b64_tr_b16 %s, v%d offset:%d" % (vr(WF + ws * 8 + nb * 4 + 2 * u, 2), vWr + nb, slot * 2048 + u * 1024)
                for nb in range(2) for u in range(2)]

    def mm(slot, ws, first):
        out = []
        for nb in range(2):
            for qb in range(2):
                acc = vr(ACC + (nb * 2 + qb) * 16, 16)
                out.append("v_mfma_f32_32x32x16_bf16 %s, %s, %s, %s" % (
                    acc, vr(WF + ws * 8 + nb * 4, 4), vr(CF + slot * 8 + qb * 4, 4), "0" if first else acc))
        return out

    issued = 0
    for n in range(DEPTH - 1):
        for f in issue(n % DEPTH, n):
            e(f)
        issued += 1
    e("s_waitcnt vmcnt(%d)" % (4 * (issued - 1)))
    for f in wread(0, 0):
        e(f)
    for n in range(NS):
        if n + 1 < NS:
            e("s_waitcnt vmcnt(%d) lgkmcnt(0)" % (4 * (issued - (n + 2))))
            nxt = wread((n + 1) % DEPTH, (n + 1) & 1)
        else:
            e("s_waitcnt lgkmcnt(0)")
            nxt = []
        ms = mm(n % DEPTH, n & 1, n == 0)
        fl = list(nxt)
        if issued < NS:
            fl += issue(issued % DEPTH, issued)
            issued += 1
        interleave(a, ms, fl)
    stamp(a, 1)
    e("s_nop 7")
    e("s_nop 7")
    e("s_barrier")
    e("s_lshl_b32 s%d, s%d, 12" % (sT0, sW))
    e("v_add_u32 v%d, s%d, v%d" % (vT, sT0, vL16))
    for t in range(4):
        if t == 2:
            e("v_add_u32 v%d, 0x10000, v%d" % (vT, vT))
        for c in range(4):
            e("ds_write_b128 v%d, %s offset:%d" % (vT, vr(ACC + t * 16 + 4 * c, 4), (t & 1) * 32768 + c * 1024))
    e("s_waitcnt lgkmcnt(0)")
    e("s_barrier")
    e("s_lshr_b32 s%d, s%d, 1" % (sT0, sW))
    e("s_lshl_b32 s%d, s%d, 15" % (sT0, sT0))
    e("s_and_b32 s%d, s%d, 1" % (sT1, sW))
    e("s_lshl_b32 s%d, s%d, 11" % (sT1, sT1))
    e("s_add_u32 s%d, s%d, s%d" % (sT0, sT0, sT1))
    e("v_add_u32 v%d, s%d, v%d" % (vT, sT0, vL16))
    for k in range(8):
        for c in range(2):
            e("ds_read_b128 %s, v%d offset:%d" % (vr(ACC + k * 8 + 4 * c, 4), vT, k * 4096 + c * 1024))
    e("s_waitcnt lgkmcnt(0)")
    for st in (1, 2, 4):
        for k in range(0, 8, 2 * st):
            for r in range(8):
                e("v_add_f32 v%d, v%d, v%d" % (ACC + k * 8 + r, ACC + k * 8 + r, ACC + (k + st) * 8 + r))
    for r in range(4):
        e("v_cvt_pk_bf16_f32 v%d, v%d, v%d" % (CF + r, ACC + 2 * r, ACC + 2 * r + 1))
    e("s_bfe_u32 s%d, s%d, 0x10001" % (sT0, sW))
    e("s_lshl_b32 s%d, s%d, 5" % (sT0, sT0))
    e("s_lshl_b32 s%d, s%d, 6" % (sT1, sQt))
    e("s_add_u32 s%d, s%d, s%d" % (sT0, sT0, sT1))
    e("s_mul_i32 s%d, s%d, 896" % (sT0, sT0))
    e("s_lshr_b32 s%d, s%d, 2" % (sT1, sW))
    e("s_lshl_b32 s%d, s%d, 6" % (sT1, sT1))
    e("s_add_u32 s%d, s%d, s%d" % (sT0, sT0, sT1))
    e("s_and_b32 s%d, s%d, 1" % (sT1, sW))
    e("s_lshl_b32 s%d, s%d, 5" % (sT1, sT1))
    e("s_add_u32 s%d, s%d, s%d" % (sT0, sT0, sT1))
    e("s_lshl_b32 s%d, s%d, 7" % (sT1, sNt))
    e("s_add_u32 s%d, s%d, s%d" % (sT0, sT0, sT1))
    e("v_lshrrev_b32 v%d, 4, v%d" % (vT, vL16))
    e("v_and_b32 v%d, 31, v%d" % (vT + 1, vT))
    e("v_mul_u32_u24 v%d, 896, v%d" % (vT + 1, vT + 1))
    e("v_lshrrev_b32 v%d, 5, v%d" % (vT, vT))
    e("v_lshl_add_u32 v%d, v%d, 3, v%d" % (vT, vT, vT + 1))
    for i in range(2):
        e("buffer_store_dwordx2 %s, v%d, %s, s%d offen offset:%d" % (vr(CF + 2 * i, 2), vT, sr(SO, 4), sT0, i * 16))
    if STAMP:
        e("s_waitcnt vmcnt(0)")
    for k in range(2, 8):
        stamp(a, k)
    stamp(a, 9, real=True)
    stamp_dump(a, 10, SWS, sW, sT0, kidx=NKIDX, wave=int(os.environ.get('K3WAVE','0')))
    a.label("K3_END")
    e("s_endpgm")
    nv = (NV + 7) // 8 * 8
    return kernel_desc(name, nv, 96, nv)


NKIDX = int(os.environ.get("K3IDX", "3"))
LAUNCH = "; @launch kernel=k3_oproj_kernel grid=(224,1,1) block=(512,1,1) lds=%d" % max(NW * DEPTH * 2048, 131072)
```

```python
import struct, os
from asmlib import *
from layout import *

LAUNCH = "; @launch kernel=k1_proj_kernel grid=(256,1,1) block=(512,1,1) lds=163840"
STF = os.environ.get("K1ST", "sc1")
ROT1 = int(os.environ.get("ROT1", "3"))
ROT2 = int(os.environ.get("ROT2", "3"))


def f32hex(x):
    return "0x%08x" % struct.unpack("<I", struct.pack("<f", x))[0]


def gen_k1(a, name="k1_proj_kernel"):
    e = a.e
    SXs, SWs, SWS = {1: 4, 2: 12}, {1: 8, 2: 16}, 20
    sW, sWr, sWc = 24, 25, 26
    sXslot, sXrd, sDelta = 27, 28, 29
    sWk, sXk = 30, 31
    sWoffX, sWoffW = 32, 33
    sLoop = 34
    sT0, sT1, sT2, sT3 = 35, 36, 37, 38
    sOut = 39
    sXT, sWT = 40, 41
    sRot = {1: 42, 2: 43}
    sWstep = {1: 44, 2: 45}
    sX, sJ, sH, sIsV, sRb1 = 46, 47, 48, 49, 50
    sRb2, sC32, sHW, sLdw2, sIsA, sSpare, sCA = 51, 68, 69, 70, 71, 94, 95
    ACC = 0
    XF = [128, 176]
    WF = [144, 192]
    vXa = 224
    vWa = {1: 226, 2: 234}
    vOX = {1: 240, 2: 244}
    vOW = {1: 248, 2: 250}
    vSt, vLane = 252, 253
    vT = 254
    L = "v%d" % vLane
    t = 128
    NCOL = {1: 256, 2: 192}
    NHS = {1: 32, 2: 14}
    WSR = sr(SWS, 4)

    a.raw(".p2align 8")
    a.label(name)
    e("s_cmp_ge_u32 s2, 256")
    e("s_cbranch_scc1 K1_END")
    stamp(a, 0)
    stamp(a, 8, real=True)
    e("s_load_dwordx4 s[52:55], s[0:1], 0")
    e("s_load_dwordx4 s[56:59], s[0:1], 32")
    e("s_load_dwordx4 s[60:63], s[0:1], 48")
    e("s_load_dwordx2 s[64:65], s[0:1], 72")
    e("s_load_dwordx2 s[66:67], s[0:1], 96")
    e("v_and_b32 %s, 63, v0" % L)
    e("v_lshrrev_b32 v%d, 6, v0" % t)
    e("s_and_b32 s%d, s2, 7" % sX)
    e("v_readfirstlane_b32 s%d, v%d" % (sW, t))
    e("s_lshr_b32 s%d, s2, 3" % sJ)
    e("s_and_b32 s%d, s%d, 7" % (sRb1, sJ))
    e("s_lshr_b32 s%d, s%d, 3" % (sT0, sJ))
    e("s_and_b32 s%d, s%d, 1" % (sT1, sT0))
    e("s_lshl_b32 s%d, s%d, 1" % (sH, sX))
    e("s_add_u32 s%d, s%d, s%d" % (sH, sH, sT1))
    e("s_lshr_b32 s%d, s%d, 1" % (sIsV, sT0))
    e("s_lshr_b32 s%d, s%d, 1" % (sT1, sRb1))
    e("s_add_u32 s%d, s%d, s%d" % (sRot[1], sT0, sT1))
    e("s_and_b32 s%d, s%d, %d" % (sRot[1], sRot[1], ROT1))
    e("s_and_b32 s%d, s%d, 3" % (sWr, sW))
    e("s_lshr_b32 s%d, s%d, 2" % (sWc, sW))
    e("s_lshl_b32 s%d, s%d, 12" % (sWoffX, sW))
    e("s_lshl_b32 s%d, s%d, 11" % (sWoffW, sW))
    e("s_mul_i32 s%d, s%d, 30" % (sT0, sX))
    e("s_add_u32 s%d, s%d, s%d" % (sT0, sT0, sJ))
    e("s_cmp_ge_u32 s%d, 30" % sJ)
    e("s_cselect_b32 s%d, 1, 0" % sSpare)
    e("s_cselect_b32 s%d, 0, s%d" % (sT0, sT0))
    e("s_and_b32 s%d, s%d, 7" % (sRb2, sT0))
    e("s_lshr_b32 s%d, s%d, 3" % (sT0, sT0))
    e("s_lshr_b32 s%d, s%d, 1" % (sT1, sRb2))
    e("s_add_u32 s%d, s%d, s%d" % (sRot[2], sT0, sT1))
    e("s_and_b32 s%d, s%d, %d" % (sRot[2], sRot[2], ROT2))
    e("s_lshl_b32 s%d, s%d, 1" % (sRot[2], sRot[2]))
    e("s_cmp_ge_u32 s%d, 22" % sT0)
    e("s_cselect_b32 s%d, 1, 0" % sIsA)
    e("s_cselect_b32 s%d, 28, 32" % sHW)
    e("s_movk_i32 s%d, 8192" % sLdw2)
    e("s_cselect_b32 s%d, 2688, s%d" % (sLdw2, sLdw2))
    e("s_cselect_b32 s%d, 22, 0" % sT1)
    e("s_sub_u32 s%d, s%d, s%d" % (sT0, sT0, sT1))
    e("s_mul_i32 s%d, s%d, 6" % (sC32, sT0))
    e("s_lshl_b32 s%d, s%d, 5" % (sWstep[2], sLdw2))
    e("s_mov_b32 s%d, 0x40000" % sWstep[1])
    e("s_mov_b32 s%d, %s" % (sCA, f32hex(LOG2E * 28 ** -0.5)))
    e("v_lshrrev_b32 v%d, 4, %s" % (t + 4, L))
    e("v_and_b32 v%d, 7, %s" % (t + 1, L))
    e("v_xor_b32 v%d, v%d, v%d" % (t + 1, t + 1, t + 4))
    for g, sRb, ldx in ((1, sRb1, 2048), (2, sRb2, 896)):
        e("v_lshrrev_b32 v%d, 3, %s" % (t, L))
        e("s_lshl_b32 s%d, s%d, 5" % (sT0, sW))
        e("s_lshl_b32 s%d, s%d, 8" % (sT1, sRb))
        e("s_add_u32 s%d, s%d, s%d" % (sT0, sT0, sT1))
        e("v_add_u32 v%d, s%d, v%d" % (t, sT0, t))
        e("v_mul_u32_u24 v%d, %d, v%d" % (t, ldx, t))
        e("v_lshl_add_u32 v%d, v%d, 4, v%d" % (vOX[g], t + 1, t))
        e("v_add_u32 v%d, %d, v%d" % (vOX[g] + 1, 8 * ldx - 1024, vOX[g]))
        e("v_xor_b32 v%d, 64, v%d" % (t, vOX[g]))
        e("v_add_u32 v%d, %d, v%d" % (vOX[g] + 2, 16 * ldx, t))
        e("v_add_u32 v%d, %d, v%d" % (vOX[g] + 3, 8 * ldx - 1024, vOX[g] + 2))
    e("s_bfe_u32 s%d, s%d, 0x10001" % (sT2, sW))
    e("s_lshl_b32 s%d, s%d, 9" % (sT3, sH))
    for q in range(2):
        e("v_lshrrev_b32 v%d, 5, %s" % (t, L))
        if q:
            e("v_add_u32 v%d, 2, v%d" % (t, t))
        e("v_and_b32 v%d, 31, %s" % (t + 1, L))
        e("v_lshlrev_b32 v%d, 2, v%d" % (t + 2, t))
        e("v_xor_b32 v%d, v%d, v%d" % (t + 1, t + 1, t + 2))
        e("v_xor_b32 v%d, s%d, v%d" % (t + 1, sT2, t + 1))
        e("s_lshl_b32 s%d, s%d, 2" % (sT0, sW))
        e("v_add_u32 v%d, s%d, v%d" % (t, sT0, t))
        e("v_lshlrev_b32 v%d, 13, v%d" % (t, t))
        e("v_lshl_add_u32 v%d, v%d, 4, v%d" % (t, t + 1, t))
        e("v_add_u32 v%d, s%d, v%d" % (t, sT3, t))
        e("v_subrev_u32 v%d, %d, v%d" % (vOW[1] + q, 1024 * q, t))
    e("s_movk_i32 s%d, 2731" % sT1)
    e("s_lshl_b32 s%d, s%d, 7" % (sT0, sW))
    for q in range(2):
        e("v_add_u32 v%d, s%d, %s" % (t, sT0, L))
        if q:
            e("v_add_u32 v%d, 64, v%d" % (t, t))
        e("v_mul_lo_u32 v%d, v%d, s%d" % (t + 1, t, sT1))
        e("v_lshrrev_b32 v%d, 16, v%d" % (t + 1, t + 1))
        e("v_mul_u32_u24 v%d, 24, v%d" % (t + 2, t + 1))
        e("v_sub_u32 v%d, v%d, v%d" % (t + 2, t, t + 2))
        e("v_lshlrev_b32 v%d, 1, v%d" % (t + 3, t + 1))
        e("v_and_b32 v%d, 4, v%d" % (t + 3, t + 3))
        e("v_xor_b32 v%d, v%d, v%d" % (t + 2, t + 2, t + 3))
        e("v_bfe_u32 v%d, v%d, 3, 1" % (t + 3, t + 1))
        e("v_xor_b32 v%d, v%d, v%d" % (t + 2, t + 2, t + 3))
        e("v_lshrrev_b32 v%d, 2, v%d" % (t + 3, t + 2))
        e("v_add_u32 v%d, s%d, v%d" % (t + 3, sC32, t + 3))
        e("v_mul_lo_u32 v%d, v%d, s%d" % (t + 3, t + 3, sHW))
        e("v_and_b32 v%d, 3, v%d" % (t + 2, t + 2))
        e("v_lshl_add_u32 v%d, v%d, 3, v%d" % (t + 3, t + 2, t + 3))
        e("v_mul_lo_u32 v%d, v%d, s%d" % (t + 1, t + 1, sLdw2))
        e("v_lshl_add_u32 v%d, v%d, 1, v%d" % (t + 1, t + 3, t + 1))
        e("v_subrev_u32 v%d, %d, v%d" % (vOW[2] + q, 1024 * q, t + 1))
    e("s_cmp_lt_u32 s%d, 6" % sW)
    e("s_cbranch_scc1 K1_W2OK")
    e("v_mov_b32 v%d, 0x7ff00000" % vOW[2])
    e("v_mov_b32 v%d, 0x7ff00000" % (vOW[2] + 1))
    a.label("K1_W2OK")
    e("s_waitcnt lgkmcnt(0)")

    def srd(base, plo, nbytes):
        e("s_mov_b32 s%d, s%d" % (base, plo))
        e("s_mov_b32 s%d, s%d" % (base + 1, plo + 1))
        e("s_mov_b32 s%d, 0x%x" % (base + 2, nbytes))
        e("s_mov_b32 s%d, 0x20000" % (base + 3))
    srd(SXs[1], 56, NB['ckv'])
    srd(SXs[2], 52, NB['x'])
    srd(SWS, 66, WS_BYTES)
    e("s_cmp_eq_u32 s%d, 0" % sIsV)
    e("s_cselect_b32 s%d, s60, s62" % SWs[1])
    e("s_cselect_b32 s%d, s61, s63" % (SWs[1] + 1))
    e("s_mov_b32 s%d, %d" % (SWs[1] + 2, NB['wuk']))
    e("s_mov_b32 s%d, 0x20000" % (SWs[1] + 3))
    e("s_cmp_eq_u32 s%d, 0" % sIsA)
    e("s_cselect_b32 s%d, s58, s54" % SWs[2])
    e("s_cselect_b32 s%d, s59, s55" % (SWs[2] + 1))
    e("s_mov_b32 s%d, %d" % (SWs[2] + 2, NB['wqkv']))
    e("s_cselect_b32 s%d, %d, s%d" % (SWs[2] + 2, NB['wq'], SWs[2] + 2))
    e("s_mov_b32 s%d, 0x20000" % (SWs[2] + 3))
    e("s_mov_b32 s%d, 0x10000" % sXslot)
    e("s_mov_b32 s%d, 0" % sXrd)

    def setup2():
        e("v_lshrrev_b32 v%d, 4, %s" % (t + 4, L))
        e("v_bfe_u32 v%d, %s, 3, 1" % (t, L))
        e("v_and_b32 v%d, 7, %s" % (t + 1, L))
        e("v_lshl_add_u32 v%d, v%d, 4, v%d" % (t + 5, t, t + 1))
        e("v_bfe_u32 v%d, %s, 1, 2" % (t + 3, L))
        e("v_lshl_add_u32 v%d, v%d, 2, v%d" % (t + 3, t, t + 3))
        e("v_xor_b32 v%d, v%d, v%d" % (t + 3, t + 3, t + 4))
        e("v_lshlrev_b32 v%d, 4, v%d" % (t + 3, t + 3))
        e("s_lshl_b32 s%d, s%d, 6" % (sT0, sWr))
        e("v_add_u32 v%d, s%d, v%d" % (t + 2, sT0, t + 5))
        e("v_lshl_add_u32 v%d, v%d, 7, v%d" % (t + 2, t + 2, t + 3))
        e("v_add_u32 v%d, 0x10000, v%d" % (vXa, t + 2))
        e("v_xor_b32 v%d, 64, v%d" % (vXa + 1, vXa))
        e("v_bfe_u32 v%d, %s, 2, 2" % (t, L))
        e("v_lshl_add_u32 v%d, v%d, 3, v%d" % (t + 6, t + 4, t))
        e("v_bfe_u32 v%d, %s, 1, 1" % (t + 2, L))
        e("v_bfe_u32 v%d, %s, 4, 1" % (t + 3, L))
        e("v_lshl_add_u32 v%d, v%d, 1, v%d" % (t + 2, t + 2, t + 3))
        e("v_lshlrev_b32 v%d, 4, v%d" % (t + 2, t + 2))
        e("v_and_b32 v%d, 1, %s" % (t + 1, L))
        e("v_lshl_add_u32 v%d, v%d, 3, v%d" % (t + 7, t + 1, t + 2))
        e("v_lshl_add_u32 v%d, v%d, 9, v%d" % (t + 1, t + 6, t + 7))
        e("s_lshl_b32 s%d, s%d, 2" % (sT0, sWc))
        for jj in range(4):
            e("s_add_u32 s%d, s%d, %d" % (sT1, sT0, jj))
            e("v_xor_b32 v%d, s%d, v%d" % (t + 2, sT1, t))
            e("v_lshl_add_u32 v%d, v%d, 6, v%d" % (vWa[1] + 2 * jj, t + 2, t + 1))
            e("v_xor_b32 v%d, 16, v%d" % (vWa[1] + 2 * jj + 1, vWa[1] + 2 * jj))
        e("v_mul_u32_u24 v%d, 384, v%d" % (t + 1, t + 6))
        e("v_add_u32 v%d, v%d, v%d" % (t + 1, t + 1, t + 7))
        e("v_bfe_u32 v%d, %s, 3, 1" % (t, L))
        e("s_mul_i32 s%d, s%d, 3" % (sT0, sWc))
        for jj in range(3):
            e("s_add_u32 s%d, s%d, %d" % (sT1, sT0, jj))
            e("v_xor_b32 v%d, s%d, v%d" % (t + 2, sT1, t))
            e("v_lshl_add_u32 v%d, v%d, 6, v%d" % (vWa[2] + 2 * jj, t + 2, t + 1))
            e("v_xor_b32 v%d, 16, v%d" % (vWa[2] + 2 * jj + 1, vWa[2] + 2 * jj))
        e("v_lshrrev_b32 v%d, 5, %s" % (t + 2, L))
        e("v_lshl_add_u32 v%d, v%d, 5, v%d" % (t + 1, t + 3, t + 5))
        e("v_lshlrev_b32 v%d, 4, v%d" % (t + 1, t + 1))
        e("v_lshl_add_u32 v%d, v%d, 10, v%d" % (vSt, t + 2, t + 1))

    def store_block(tmp, ib, jj, vtype, voff, jstep, soff, imm, pre=None):
        for j in range(2):
            if vtype:
                r0 = ACC + ((2 * ib + 0) * 8 + 2 * jj + j) * 4
                r1 = ACC + ((2 * ib + 1) * 8 + 2 * jj + j) * 4
            else:
                r0 = ACC + ((2 * ib + j) * 8 + 2 * jj + 0) * 4
                r1 = ACC + ((2 * ib + j) * 8 + 2 * jj + 1) * 4
            if pre:
                pre(r0, r1)
            tb = tmp + 4 * j
            e("v_cvt_pk_bf16_f32 v%d, v%d, v%d" % (tb, r0, r0 + 1))
            e("v_cvt_pk_bf16_f32 v%d, v%d, v%d" % (tb + 1, r0 + 2, r0 + 3))
            e("v_cvt_pk_bf16_f32 v%d, v%d, v%d" % (tb + 2, r1, r1 + 1))
            e("v_cvt_pk_bf16_f32 v%d, v%d, v%d" % (tb + 3, r1 + 2, r1 + 3))
            a.vm("buffer_store_dwordx4 %s, v%d, %s, s%d offen offset:%d %s" % (vr(tb, 4), voff, WSR, soff, imm + j * jstep, STF), 'S')

    def epilogue1(vtype, tmp):
        e("s_lshl_b32 s%d, s%d, 6" % (sT0, sH))
        e("s_lshl_b32 s%d, s%d, 3" % (sT1, sRb1))
        e("s_add_u32 s%d, s%d, s%d" % (sT0, sT0, sT1))
        e("s_lshl_b32 s%d, s%d, 1" % (sT1, sWr))
        e("s_add_u32 s%d, s%d, s%d" % (sT0, sT0, sT1))
        e("s_lshl_b32 s%d, s%d, 5" % (sT0, sT0))
        e("s_lshl_b32 s%d, s%d, 4" % (sT1, sIsV))
        e("s_add_u32 s%d, s%d, s%d" % (sT0, sT0, sT1))
        e("s_lshl_b32 s%d, s%d, 3" % (sT1, sWc))
        e("s_add_u32 s%d, s%d, s%d" % (sT0, sT0, sT1))
        e("s_lshl_b32 s%d, s%d, 10" % (sOut, sT0))
        k = 0
        for ib in range(2):
            for jj in range(4):
                if jj == 2:
                    e("s_add_u32 s%d, s%d, 4096" % (sOut, sOut))
                store_block(tmp + 8 * (k % 6), ib, jj, vtype, vSt, 128, sOut, (jj & 1) * 2048)
                k += 1
            e("s_add_u32 s%d, s%d, %d" % (sOut, sOut, 32768 - 4096))

    def padfix(val):
        def f(r0, r1):
            e("s_mov_b32 exec_lo, 0")
            e("s_mov_b32 exec_hi, 0xffff0000")
            e("v_mov_b32 v%d, %s" % (r1, val))
            for r in (1, 2, 3):
                e("v_mov_b32 v%d, 0" % (r1 + r))
            e("s_mov_b64 exec, -1")
        return f

    def qfix(r0, r1):
        for r in range(4):
            e("v_mul_f32 v%d, s%d, v%d" % (r0 + r, sCA, r0 + r))
            e("v_mul_f32 v%d, s%d, v%d" % (r1 + r, sCA, r1 + r))
        padfix("0")(r0, r1)

    def epilogue2(tmp):
        e("s_lshl_b32 s%d, s%d, 3" % (sT3, sRb2))
        e("s_lshl_b32 s%d, s%d, 1" % (sT1, sWr))
        e("s_add_u32 s%d, s%d, s%d" % (sT3, sT3, sT1))
        for jj in range(3):
            lab_a, lab_ak, lab_av, lab_n = [a.newlabel("K1_E") for _ in range(4)]
            tm = tmp + 16 * jj
            e("s_mul_i32 s%d, s%d, 3" % (sT0, sWc))
            e("s_add_u32 s%d, s%d, s%d" % (sT0, sT0, sC32))
            e("s_add_u32 s%d, s%d, %d" % (sT0, sT0, jj))
            e("s_cmp_lg_u32 s%d, 0" % sIsA)
            e("s_cbranch_scc1 %s" % lab_a)
            e("s_lshr_b32 s%d, s%d, 3" % (sT1, sT0))
            e("s_lshl_b32 s%d, s%d, 20" % (sT1, sT1))
            e("s_and_b32 s%d, s%d, 7" % (sT2, sT0))
            e("s_lshl_b32 s%d, s%d, 11" % (sT2, sT2))
            e("s_add_u32 s%d, s%d, s%d" % (sOut, sT1, sT2))
            e("s_lshl_b32 s%d, s%d, 14" % (sT1, sT3))
            e("s_add_u32 s%d, s%d, s%d" % (sOut, sOut, sT1))
            e("s_add_u32 s%d, s%d, 0x%x" % (sOut, sOut, WS_QB))
            e("s_cmp_ge_u32 s%d, 128" % sT0)
            e("s_cselect_b32 s%d, 0x7ff00000, s%d" % (sOut, sOut))
            e("s_cmp_lg_u32 s%d, 0" % sSpare)
            e("s_cselect_b32 s%d, 0x7ff00000, s%d" % (sOut, sOut))
            vq0 = list(a.vq)
            for ib in range(2):
                store_block(tm + 8 * ib, ib, jj, 0, vSt, 128, sOut, 0)
                e("s_add_u32 s%d, s%d, 16384" % (sOut, sOut))
            vq1 = list(a.vq)
            e("s_branch %s" % lab_n)
            a.label(lab_a)
            e("s_and_b32 s%d, s%d, 15" % (sT1, sT0))
            e("s_lshl_b32 s%d, s%d, 6" % (sT1, sT1))
            e("s_add_u32 s%d, s%d, s%d" % (sT1, sT1, sT3))
            e("s_lshr_b32 s%d, s%d, 4" % (sT2, sT0))
            e("s_cmp_eq_u32 s%d, 1" % sT2)
            e("s_cbranch_scc1 %s" % lab_ak)
            e("s_cmp_eq_u32 s%d, 2" % sT2)
            e("s_cbranch_scc1 %s" % lab_av)
            e("s_lshl_b32 s%d, s%d, 11" % (sOut, sT1))
            e("s_add_u32 s%d, s%d, 0x%x" % (sOut, sOut, WS_QA))
            for ib in range(2):
                store_block(tm + 8 * ib, ib, jj, 0, vSt, 128, sOut, ib * 2048, pre=qfix)
            e("s_branch %s" % lab_n)
            a.label(lab_ak)
            e("s_lshl_b32 s%d, s%d, 12" % (sOut, sT1))
            e("s_add_u32 s%d, s%d, 0x%x" % (sOut, sOut, WS_KVA))
            for ib in range(2):
                store_block(tm + 8 * ib, ib, jj, 0, vSt, 128, sOut, 0, pre=padfix("0"))
                e("s_add_u32 s%d, s%d, 4096" % (sOut, sOut))
            e("s_branch %s" % lab_n)
            a.label(lab_av)
            e("s_lshl_b32 s%d, s%d, 12" % (sOut, sT1))
            e("s_add_u32 s%d, s%d, 0x%x" % (sOut, sOut, WS_KVA + 2048))
            e("v_bfe_u32 v%d, %s, 3, 1" % (vT, L))
            e("v_and_b32 v%d, 7, %s" % (vT + 1, L))
            e("v_lshl_add_u32 v%d, v%d, 4, v%d" % (vT, vT, vT + 1))
            e("v_lshrrev_b32 v%d, 4, %s" % (vT + 1, L))
            e("v_lshlrev_b32 v%d, 4, v%d" % (vT + 1, vT + 1))
            e("v_lshl_add_u32 v%d, v%d, 6, v%d" % (vT, vT, vT + 1))
            for ib in range(2):
                store_block(tm + 8 * ib, ib, jj, 0, vT, 512, sOut, 0, pre=padfix("1.0"))
                e("s_add_u32 s%d, s%d, 4096" % (sOut, sOut))
            a.label(lab_n)
            a.vq = vq1

    def sequence(order, vtype, tag):
        a.vq = []
        NA = NHS[order[0]]
        NH = NA + NHS[order[1]]

        def G(b):
            return order[0] if b < NA else order[1]

        def tau(g, sCnt, sDst):
            if g == 1:
                return ["s_add_u32 s%d, s%d, s%d" % (sDst, sCnt, sRot[1]),
                        "s_and_b32 s%d, s%d, 3" % (sDst, sDst),
                        "s_andn2_b32 s%d, s%d, 3" % (sT2, sCnt),
                        "s_or_b32 s%d, s%d, s%d" % (sDst, sDst, sT2),
                        "s_add_u32 s%d, s%d, 1" % (sCnt, sCnt)]
            return ["s_add_u32 s%d, s%d, s%d" % (sDst, sCnt, sRot[2]),
                    "s_sub_u32 s%d, s%d, 7" % (sT2, sDst),
                    "s_cmp_ge_u32 s%d, 7" % sDst,
                    "s_cselect_b32 s%d, s%d, s%d" % (sDst, sT2, sDst),
                    "s_add_u32 s%d, s%d, 1" % (sCnt, sCnt)]

        def dmaW(b):
            if b >= NH:
                return []
            g = G(b)
            f = []
            if b == 0 or b == NA:
                f.append("s_mov_b32 s%d, 0" % sWT)
            if b % 2 == 0:
                f += tau(g, sWT, sWk)
                f.append("s_mul_i32 s%d, s%d, s%d" % (sWk, sWk, sWstep[g]))
                f.append("s_lshl_b32 s%d, s%d, 1" % (sWk, sWk))
            f += ["s_add_u32 m0, s%d, %d" % (sWoffW, (b & 3) * 16384), "s_nop 0"]
            for q in range(2):
                ins = "buffer_load_dwordx4 v%d, %s, s%d offen offset:%d lds" % (vOW[g] + q, sr(SWs[g], 4), sWk, q * 1024)
                f.append((lambda ins=ins: a.vm(ins, ('W', b))))
            if b % 2 == 0:
                f.append("s_add_u32 s%d, s%d, s%d" % (sWk, sWk, sWstep[g]))
            return f

        def dmaX(T, half):
            if 2 * T >= NH:
                return []
            g = G(2 * T)
            f = []
            if half == 0:
                if T == 0 or 2 * T == NA:
                    f.append("s_mov_b32 s%d, 0" % sXT)
                f += tau(g, sXT, sXk)
                f.append("s_add_u32 m0, s%d, s%d" % (sXslot, sWoffX))
                f.append("s_lshl_b32 s%d, s%d, 7" % (sXk, sXk))
            else:
                f.append("s_add_u32 s%d, s%d, s%d" % (sT0, sXslot, sWoffX))
                f.append("s_add_u32 m0, s%d, 0x800" % sT0)
                f.append("s_add_u32 s%d, s%d, 0x8000" % (sXslot, sXslot))
            for p in range(2):
                ins = "buffer_load_dwordx4 v%d, %s, s%d offen offset:%d lds" % (vOX[g] + 2 * half + p, sr(SXs[g], 4), sXk, p * 1024)
                f.append((lambda ins=ins: a.vm(ins, ('X', T))))
            if half == 1:
                f.append("s_cmp_ge_u32 s%d, 0x28000" % sXslot)
                f.append("s_cselect_b32 s%d, 0x10000, s%d" % (sXslot, sXslot))
            return f

        def reads(b):
            g = G(b)
            st = b & 1
            RB = NCOL[g] * 2
            xr = ["ds_read_b128 %s, v%d offset:%d" % (vr(XF[st] + 4 * i, 4), vXa + (b & 1), (i >> 1) * 4096 + (i & 1) * 1024)
                  for i in range(4)]
            wr = []
            for jj in range(NCOL[g] // 64):
                for j in range(2):
                    for u in range(2):
                        wr.append("ds_read_b64_tr_b16 %s, v%d offset:%d" % (
                            vr(WF[st] + 8 * jj + 4 * j + 2 * u, 2), vWa[g] + 2 * jj + j, (b & 3) * 16384 + u * 4 * RB))
            return [xr[0]] + wr[:4] + [xr[1]] + wr[4:] + xr[2:]

        def mfmas(b):
            g = G(b)
            st = b & 1
            first = b == 0 or b == NA
            out = []
            for i in range(4):
                for c in range(NCOL[g] // 32):
                    acc = vr(ACC + (i * 8 + c) * 4, 4)
                    x = vr(XF[st] + 4 * i, 4)
                    w = vr(WF[st] + 4 * c, 4)
                    A, B = (x, w) if (vtype and g == 1) else (w, x)
                    out.append("v_mfma_f32_16x16x32_bf16 %s, %s, %s, %s" % (acc, A, B, "0" if first else acc))
            return out

        def addr_update():
            f = ["s_add_u32 s%d, s%d, 0x8000" % (sT1, sXrd),
                 "s_cmp_ge_u32 s%d, 0x18000" % sT1,
                 "s_cselect_b32 s%d, 0, s%d" % (sT1, sT1),
                 "s_sub_u32 s%d, s%d, s%d" % (sDelta, sT1, sXrd),
                 "s_mov_b32 s%d, s%d" % (sXrd, sT1)]
            for s in range(2):
                f.append("v_add_u32 v%d, s%d, v%d" % (vXa + s, sDelta, vXa + s))
            return f

        def epi(g, b_last):
            tmp = XF[b_last & 1]
            e("s_nop 7")
            if g == 1:
                epilogue1(vtype, tmp)
            else:
                epilogue2(tmp)

        def half_iter(b):
            T = b >> 1
            n = a.vm_need(lambda tg: tg == ('W', b) or tg == ('X', T))
            e("s_waitcnt vmcnt(%d) lgkmcnt(0)" % n)
            e("s_barrier")
            m = mfmas(b - 1) if b > 0 else []
            f = reads(b) + dmaW(b + 3) + dmaX(T + 2, b & 1) + (addr_update() if (b & 1) else [])
            interleave(a, m, f)
            if b == NA:
                stamp(a, 2)
                epi(order[0], b - 1)
                stamp(a, 3)
                if order[0] == 1:
                    e("s_cmp_lg_u32 s%d, 0" % sSpare)
                    e("s_cbranch_scc1 K1_GATE")
            return n

        for f in dmaX(0, 0) + dmaX(0, 1) + dmaW(0) + dmaW(1) + dmaX(1, 0) + dmaX(1, 1) + dmaW(2):
            emit1(a, f)
        setup2()
        g1_start = 0 if order[0] == 1 else NA
        lo = g1_start + 6 if g1_start else 4
        lo = (lo + 3) // 4 * 4
        hi = g1_start + 32 - 4
        nloop = (hi - lo) // 4
        b = 0
        while b < NH:
            if b == lo and nloop >= 2:
                e("s_mov_b32 s%d, %d" % (sLoop, nloop))
                lab = "K1_LOOP_%s" % tag
                a.label(lab)
                ns = [half_iter(b + k) for k in range(4)]
                e("s_sub_u32 s%d, s%d, 1" % (sLoop, sLoop))
                e("s_cmp_lg_u32 s%d, 0" % sLoop)
                e("s_cbranch_scc1 %s" % lab)
                save = a.lines
                for bb in range(b + 4, b + 4 * nloop):
                    a.lines = []
                    n = half_iter(bb)
                    assert n == ns[(bb - b) & 3], (bb, n, ns)
                a.lines = save
                b += 4 * nloop
                continue
            half_iter(b)
            if b == 0:
                stamp(a, 1)
            b += 1
        e("s_waitcnt lgkmcnt(0)")
        for m in mfmas(NH - 1):
            e(m)
        stamp(a, 4)
        epi(order[1], NH)
        e("s_branch K1_FIN")

    order = os.environ.get("K1ORDER", "stagger")
    if order == "stagger":
        e("s_bitcmp1_b32 s%d, 0" % sJ)
        e("s_cselect_b32 s%d, 1, 0" % sT0)
        e("s_andn2_b32 s%d, s%d, s%d" % (sT0, sT0, sSpare))
        e("s_cbranch_scc1 K1_ORD21")
    elif order == "b":
        e("s_cmp_eq_u32 s%d, 0" % sSpare)
        e("s_cbranch_scc1 K1_ORD21")
    e("s_cmp_lg_u32 s%d, 0" % sIsV)
    e("s_cbranch_scc1 K1_12V")
    sequence((1, 2), 0, "12k")
    a.label("K1_12V")
    sequence((1, 2), 1, "12v")
    a.label("K1_ORD21")
    e("s_cmp_lg_u32 s%d, 0" % sIsV)
    e("s_cbranch_scc1 K1_21V")
    sequence((2, 1), 0, "21k")
    a.label("K1_21V")
    sequence((2, 1), 1, "21v")

    a.label("K1_GATE")
    e("s_waitcnt vmcnt(0) lgkmcnt(0)")
    srd(SWs[1], 64, NB['gw'])
    e("s_sub_u32 s%d, s%d, 30" % (sT0, sJ))
    e("s_lshl_b32 s%d, s%d, 1" % (sT1, sX))
    e("s_add_u32 s%d, s%d, s%d" % (sT3, sT0, sT1))
    e("s_lshl_b32 s%d, s%d, 7" % (sT0, sT3))
    e("s_lshl_b32 s%d, s%d, 4" % (sT1, sW))
    e("s_add_u32 s%d, s%d, s%d" % (sT0, sT0, sT1))
    e("v_and_b32 v2, 15, %s" % L)
    e("v_add_u32 v2, s%d, v2" % sT0)
    e("v_lshrrev_b32 v3, 4, %s" % L)
    e("v_mul_u32_u24 v3, 224, v3")
    e("v_mul_u32_u24 v4, 896, v2")
    e("v_add_u32 v4, v4, v3")
    e("v_mov_b32 v5, 0")
    for c in range(14):
        e("buffer_load_dwordx4 %s, v4, %s, 0 offen offset:%d" % (vr(8 + 4 * c, 4), sr(SXs[2], 4), c * 16))
        e("buffer_load_dwordx4 %s, v3, %s, 0 offen offset:%d" % (vr(64 + 4 * c, 4), sr(SWs[1], 4), c * 16))
    e("s_waitcnt vmcnt(0)")
    for r in range(56):
        e("v_dot2_f32_bf16 v5, v%d, v%d, v5" % (8 + r, 64 + r))
    e("s_nop 3")
    e("v_mov_b32 v6, v5")
    e("s_nop 1")
    e("v_permlane32_swap_b32 v5, v6")
    e("s_nop 1")
    e("v_add_f32 v5, v5, v6")
    e("v_mov_b32 v6, v5")
    e("s_nop 1")
    e("v_permlane16_swap_b32 v5, v6")
    e("s_nop 1")
    e("v_add_f32 v5, v5, v6")
    e("v_cvt_pk_bf16_f32 v5, v5, v5")
    e("v_lshlrev_b32 v5, 16, v5")
    e("v_mul_f32 v5, %s, v5" % f32hex(-LOG2E))
    e("v_exp_f32 v5, v5")
    e("s_nop 0")
    e("v_add_f32 v5, 1.0, v5")
    e("v_rcp_f32 v5, v5")
    e("s_nop 0")
    e("v_cvt_pk_bf16_f32 v5, v5, v5")
    e("v_lshlrev_b32 v5, 16, v5")
    e("v_sub_f32 v6, 1.0, v5")
    e("v_cvt_pk_bf16_f32 v6, v6, v6")
    e("v_lshlrev_b32 v6, 16, v6")
    e("v_lshlrev_b32 v2, 2, v2")
    e("s_mov_b32 s%d, 0x%x" % (sT0, WS_G))
    e("s_mov_b32 s%d, 0x%x" % (sT1, WS_G + 8192))
    e("s_mov_b64 exec, 0xffff")
    e("buffer_store_dword v5, v2, %s, s%d offen" % (WSR, sT0))
    e("buffer_store_dword v6, v2, %s, s%d offen" % (WSR, sT1))
    e("s_mov_b64 exec, -1")
    e("s_lshl_b32 s%d, s%d, 13" % (sT0, sT3))
    e("s_lshl_b32 s%d, s%d, 10" % (sT1, sW))
    e("s_add_u32 s%d, s%d, s%d" % (sT0, sT0, sT1))
    e("s_add_u32 s%d, s%d, 0x%x" % (sT0, sT0, WS_FLAG))
    e("v_lshlrev_b32 v2, 4, %s" % L)
    for r in range(4):
        e("v_mov_b32 v%d, 0" % (8 + r))
    e("buffer_store_dwordx4 v[8:11], v2, %s, s%d offen" % (WSR, sT0))
    a.label("K1_FIN")
    stamp(a, 5)
    if STAMP:
        e("s_waitcnt vmcnt(0)")
    stamp(a, 6)
    stamp(a, 7)
    stamp(a, 9, real=True)
    stamp_dump(a, 10, SWS, sW, sT0)
    a.label("K1_END")
    e("s_endpgm")
    return kernel_desc(name, 256, 100, 256)
```

```python
import struct, os
from asmlib import *
from layout import *

LAUNCH = "; @launch kernel=k2_attn_kernel grid=(256,1,1) block=(512,1,1) lds=163840"
SPLIT = int(os.environ.get("SPLIT", "36"))
THR = float(os.environ.get("THR", "32"))
PART_WAVE = 33 * 1024
PFD = int(os.environ.get("PFD", "1"))
BPRIO = int(os.environ.get("BPRIO", "0"))
YF = int(os.environ.get("YF", "1"))
KROT = int(os.environ.get("KROT", "3"))
WS_Y = 128 << 20
YU = 36864
LDS_A = 0x20000


def f32hex(x):
    return "0x%08x" % struct.unpack("<I", struct.pack("<f", x))[0]


def gen_k2(a, name="k2_attn_kernel"):
    e0 = a.e
    BW = os.environ.get("BARW")

    def e(s):
        if BW and s == "s_barrier":
            e0("s_memtime s[56:57]")
            e0("s_waitcnt lgkmcnt(0)")
            e0("s_barrier")
            e0("s_memtime s[58:59]")
            e0("s_waitcnt lgkmcnt(0)")
            e0("s_sub_u32 s61, s58, s56")
            e0("s_add_u32 s60, s60, s61")
        else:
            e0(s)
    SWS = 4
    WSR = sr(SWS, 4)
    sW, sH, sI, sRole = 8, 9, 10, 11
    sQb, sKb0, sKb1, sMode = 12, 13, 14, 15
    sJw, sJ, sSeg = 16, 17, 18
    sKV = 19
    sN1, sTT = 20, 21
    sKb0a = 22
    sT = 23
    sC, sThrAdd = 24, 25
    sWoff = 26
    sT0, sT1, sT2, sT3 = 27, 28, 29, 30
    sPart, sFlag = 31, 32
    sEnd = 33
    sSpin = 34
    sInit, sPend = 35, 44
    C = LOG2E / 16.0

    a.raw(".p2align 8")
    a.label(name)
    e("s_cmp_ge_u32 s2, 256")
    e("s_cbranch_scc1 K2_END")
    stamp(a, 0)
    stamp(a, 8, real=True)
    e("s_load_dwordx2 s[36:37], s[0:1], 96")
    e("s_mov_b32 s60, 0")
    e("s_load_dwordx2 s[64:65], s[0:1], 64")
    e("s_load_dwordx2 s[66:67], s[0:1], 16")
    e("v_lshrrev_b32 v1, 6, v0")
    e("v_and_b32 v2, 63, v0")
    e("v_readfirstlane_b32 s%d, v1" % sW)
    e("s_lshr_b32 s%d, s2, 7" % sRole)
    e("s_and_b32 s%d, s2, 7" % sT0)
    e("s_lshl_b32 s%d, s%d, 1" % (sH, sT0))
    e("s_bfe_u32 s%d, s2, 0x10003" % sT0)
    e("s_add_u32 s%d, s%d, s%d" % (sH, sH, sT0))
    e("s_bfe_u32 s%d, s2, 0x30004" % sI)
    e("s_lshl_b32 s%d, s%d, 21" % (sKV, sH))
    e("s_sub_u32 s%d, 15, s%d" % (sQb, sI))
    e("s_lshl_b32 s%d, s%d, 2" % (sT0, sQb))
    e("s_add_u32 s%d, s%d, 4" % (sT0, sT0))
    e("s_cmp_eq_u32 s%d, 0" % sRole)
    e("s_cbranch_scc1 K2_PROD")
    e("s_mov_b32 s%d, 0" % sKb0)
    e("s_min_u32 s%d, s%d, %d" % (sKb1, sT0, SPLIT))
    e("s_cmp_gt_u32 s%d, %d" % (sT0, SPLIT))
    e("s_cselect_b32 s%d, 2, 0" % sMode)
    e("s_mov_b32 s%d, s%d" % (sN1, sKb1))
    e("s_mov_b32 s%d, s%d" % (sTT, sKb1))
    e("s_mov_b32 s%d, 1" % sSeg)
    e("s_branch K2_SETUP_DONE")
    a.label("K2_PROD")
    e("s_lshl_b32 s%d, s%d, 2" % (sT1, sI))
    e("s_add_u32 s%d, s%d, 4" % (sT1, sT1))
    e("s_cmp_gt_u32 s%d, %d" % (sT0, SPLIT))
    e("s_cbranch_scc1 K2_PROD2")
    e("s_mov_b32 s%d, s%d" % (sQb, sI))
    e("s_mov_b32 s%d, 0" % sKb0)
    e("s_mov_b32 s%d, s%d" % (sKb1, sT1))
    e("s_mov_b32 s%d, 0" % sMode)
    e("s_mov_b32 s%d, s%d" % (sN1, sT1))
    e("s_mov_b32 s%d, s%d" % (sTT, sT1))
    e("s_mov_b32 s%d, 1" % sSeg)
    e("s_branch K2_SETUP_DONE")
    a.label("K2_PROD2")
    e("s_mov_b32 s%d, %d" % (sKb0, SPLIT))
    e("s_mov_b32 s%d, s%d" % (sKb1, sT0))
    e("s_mov_b32 s%d, 1" % sMode)
    e("s_sub_u32 s%d, s%d, %d" % (sN1, sT0, SPLIT))
    e("s_add_u32 s%d, s%d, s%d" % (sTT, sN1, sT1))
    e("s_mov_b32 s%d, 0" % sSeg)
    a.label("K2_SETUP_DONE")
    e("s_mov_b32 s%d, s%d" % (sKb0a, sKb0))
    e("s_waitcnt lgkmcnt(0)")
    e("s_mov_b32 s%d, s36" % SWS)
    e("s_mov_b32 s%d, s37" % (SWS + 1))
    e("s_mov_b32 s%d, 0x%x" % (SWS + 2, WS_BYTES))
    e("s_mov_b32 s%d, 0x20000" % (SWS + 3))
    e("s_cmp_ge_u32 s%d, 4" % sW)
    e("s_cbranch_scc1 K2_AWAVE")

    O = 0
    Q = 128
    S = [192, 208]
    FR = 224
    NFR = 6
    vL16, vV, vMc, vL, vThr, vTm, vT1, vT2 = 248, 249, 250, 251, 252, 253, 254, 255
    BSEQ = list(range(6)) * 2 + list(range(5)) * 4
    assert len(BSEQ) == 32
    prev_user = {}
    for m in range(32):
        k = 1
        while BSEQ[(m - k) % 32] != BSEQ[m]:
            k += 1
        prev_user[m] = max(m - k, m - 6)
    if BPRIO:
        e("s_setprio %d" % BPRIO)
    e("v_lshlrev_b32 v%d, 4, v2" % vL16)
    e("v_add_u32 v%d, 0x10000, v%d" % (vV, vL16))
    e("s_mov_b32 s%d, %s" % (sC, f32hex(C)))
    e("s_mov_b32 s%d, %s" % (sThrAdd, f32hex(THR)))
    e("s_mov_b32 s%d, -1" % sPend)
    e("s_lshl_b32 s%d, s%d, 3" % (sT0, sH))
    e("s_add_u32 s%d, s%d, s%d" % (sT0, sT0, sI))
    e("s_lshl_b32 s%d, s%d, 2" % (sT0, sT0))
    e("s_add_u32 s%d, s%d, s%d" % (sT0, sT0, sW))
    e("s_mul_i32 s%d, s%d, %d" % (sPart, sT0, PART_WAVE))
    e("s_add_u32 s%d, s%d, 0x%x" % (sPart, sPart, WS_PART))
    e("s_lshl_b32 s%d, s%d, 7" % (sFlag, sT0))
    e("s_add_u32 s%d, s%d, 0x%x" % (sFlag, sFlag, WS_FLAG))
    e("s_mov_b32 s%d, 0" % sT)
    e("s_mov_b32 s%d, 1" % sSpin)

    def load_q():
        e("s_lshl_b32 s%d, s%d, 6" % (sT0, sH))
        e("s_lshl_b32 s%d, s%d, 2" % (sT1, sQb))
        e("s_add_u32 s%d, s%d, s%d" % (sJw, sT1, sW))
        e("s_add_u32 s%d, s%d, s%d" % (sT0, sT0, sJw))
        e("s_lshl_b32 s%d, s%d, 14" % (sT0, sT0))
        e("s_add_u32 s%d, s%d, 0x%x" % (sT0, sT0, WS_QB))
        for s in range(16):
            if s and s % 4 == 0:
                e("s_add_u32 s%d, s%d, 4096" % (sT0, sT0))
            e("buffer_load_dwordx4 %s, v%d, %s, s%d offen offset:%d" % (vr(Q + 4 * s, 4), vL16, WSR, sT0, (s % 4) * 1024))

    load_q()
    a.label("K2_SEG")
    for r in range(128):
        e("v_mov_b32 v%d, 0" % (O + r))
    e("v_mov_b32 v%d, 0" % vL)
    e("v_mov_b32 v%d, %s" % (vMc, f32hex(-1e30 * C)))
    e("s_sub_u32 s%d, s%d, 1" % (sT0, sKb1))
    e("s_min_u32 s%d, s%d, s%d" % (sEnd, sT0, sJw))
    e("s_mov_b32 s%d, s%d" % (sJ, sKb0))
    e("s_cmp_eq_u32 s%d, 0" % sSpin)
    e("s_cbranch_scc1 K2_NOBAR")
    e("s_barrier")
    e("s_mov_b32 s%d, 0" % sSpin)
    e("s_waitcnt vmcnt(0)")
    a.label("K2_NOBAR")
    e("s_waitcnt vmcnt(33) lgkmcnt(0)")
    stamp(a, 1)
    stamp(a, 5, real=True)
    if STAMP:
        e("s_waitcnt lgkmcnt(0)")

    def fr(m):
        return vr(FR + 4 * BSEQ[m % 32], 4)

    def qk_mfma(s, sb, f):
        return "v_mfma_f32_32x32x16_bf16 %s, %s, %s, %s" % (
            vr(S[sb], 16), f, vr(Q + 4 * s, 4), "0" if s == 0 else vr(S[sb], 16))

    def pv_mfma(n, sb, f):
        db, t = n >> 1, n & 1
        return "v_mfma_f32_32x32x16_bf16 %s, %s, %s, %s" % (
            vr(O + 16 * db, 16), f, vr(S[sb] + 4 * t, 4), vr(O + 16 * db, 16))

    def rdK(f, slot, chunk):
        return "ds_read_b128 %s, v%d offset:%d" % (f, vL16, slot * 16384 + chunk * 1024)

    def rdV(f, slot, chunk):
        return "ds_read_b128 %s, v%d offset:%d" % (f, vV, slot * 16384 + chunk * 1024)

    def softmax_ops(sb):
        b = S[sb]
        ops = []
        for i in range(16 + 2):
            if i < 16:
                ops.append("v_exp_f32 v%d, v%d" % (b + i, b + i))
            k = i - 2
            if 0 <= k < 16:
                ops.append("v_add_f32 v%d, v%d, v%d" % (vL, vL, b + k))
                if k & 1:
                    ops.append("v_cvt_pk_bf16_f32 v%d, v%d, v%d" % (b + (k >> 1), b + k - 1, b + k))
        return ops

    def fma_ops(sb):
        b = S[sb]
        return ["v_fma_f32 v%d, v%d, s%d, -v%d" % (b + i, b + i, sC, vMc) for i in range(16)]

    def max_ops(sb):
        b = S[sb]
        ops = ["v_max3_f32 v%d, v%d, v%d, v%d" % (vTm, b, b + 1, b + 2)]
        for k in range(3, 15, 2):
            ops.append("v_max3_f32 v%d, v%d, v%d, v%d" % (vTm, vTm, b + k, b + k + 1))
        ops.append("v_max_f32 v%d, v%d, v%d" % (vTm, vTm, b + 15))
        ops.append("v_cmp_lt_f32 vcc, s%d, v%d" % (sThrAdd, vTm))
        return ops

    def fmamax_ops(sb):
        f = fma_ops(sb)
        m = max_ops(sb)
        ops = f[0:4] + [m[0]]
        for k in range(6):
            ops += f[4 + 2 * k:6 + 2 * k] + [m[1 + k]]
        ops += m[7:]
        return ops

    def slow_path(sb, lab):
        pass

    def emit_slow(sb, lab, back):
        a.label(lab)
        b = S[sb]
        nomask = a.newlabel("K2_NOMASK")
        ret = a.newlabel("K2_SLOWRET")
        resc = a.newlabel("K2_RESC")
        e("s_cmp_lg_u32 s%d, s%d" % (sJ, sJw))
        e("s_cbranch_scc1 %s" % nomask)
        e("v_bfe_u32 v%d, v%d, 4, 5" % (vT2, vL16))
        e("v_lshrrev_b32 v%d, 9, v%d" % (vT1, vL16))
        e("v_lshlrev_b32 v%d, 2, v%d" % (vT1, vT1))
        e("v_sub_u32 v%d, v%d, v%d" % (vT2, vT2, vT1))
        e("v_mov_b32 v%d, %s" % (vT1, f32hex(-1e30)))
        for i in range(0, 16, 2):
            for j in (0, 1):
                kk = 8 * ((i + j) >> 2) + ((i + j) & 3)
                e("v_cmp_gt_i32 s[%d:%d], %d, v%d" % (40 + 2 * j, 41 + 2 * j, kk, vT2))
            e("s_nop 0")
            for j in (0, 1):
                e("v_cndmask_b32 v%d, v%d, v%d, s[%d:%d]" % (b + i + j, b + i + j, vT1, 40 + 2 * j, 41 + 2 * j))
        a.label(nomask)
        for op in max_ops(sb):
            e(op)
        e("s_cmp_lg_u32 s%d, 0" % sInit)
        e("s_cbranch_scc1 %s" % resc)
        e("s_cbranch_vccz %s" % ret)
        a.label(resc)
        e("v_mov_b32 v%d, v%d" % (vT1, vTm))
        e("s_nop 1")
        e("v_permlane32_swap_b32 v%d, v%d" % (vTm, vT1))
        e("s_nop 1")
        e("v_max_f32 v%d, v%d, v%d" % (vTm, vTm, vT1))
        noclamp = a.newlabel("K2_NOCLAMP")
        e("s_cbranch_scc1 %s" % noclamp)
        e("v_max_f32 v%d, 0, v%d" % (vTm, vTm))
        e("v_sub_f32 v%d, 0, v%d" % (vT2, vTm))
        e("v_exp_f32 v%d, v%d" % (vT2, vT2))
        e("s_nop 7")
        e("v_mul_f32 v%d, v%d, v%d" % (vL, vL, vT2))
        for r in range(128):
            e("v_mul_f32 v%d, v%d, v%d" % (O + r, O + r, vT2))
        a.label(noclamp)
        e("v_add_f32 v%d, v%d, v%d" % (vMc, vMc, vTm))
        for i in range(16):
            e("v_sub_f32 v%d, v%d, v%d" % (b + i, b + i, vTm))
        e("s_mov_b32 s%d, 0" % sInit)
        a.label(ret)
        e("s_nop 1")
        e("s_setpc_b64 s[38:39]")

    def call_slow(sb, back):
        pass

    e("s_and_b32 s%d, s%d, 3" % (sT0, sT))
    for ph in range(1, 4):
        e("s_cmp_eq_u32 s%d, %d" % (sT0, ph))
        e("s_cbranch_scc1 K2_PRE%d" % ph)
    head_reads = [m for m in range(32) if prev_user[m] < 0]
    for ph in range(4):
        a.label("K2_PRE%d" % ph)
        cur = ph & 1
        e("s_cmp_lt_i32 s%d, s%d" % (sEnd, sKb0))
        e("s_cbranch_scc1 K2_STEP%d" % ph)
        for s in range(5):
            e(rdK(vr(FR + 4 * s, 4), ph, s))
        for s in range(16):
            e("s_waitcnt lgkmcnt(%d)" % min(4, 15 - s))
            e(qk_mfma(s, cur, vr(FR + 4 * (s % 6), 4)))
            if s + 5 < 16:
                e(rdK(vr(FR + 4 * ((s + 5) % 6), 4), ph, s + 5))
        for m in head_reads:
            e(rdK(fr(m), (ph + 1) & 3, m))
        e("v_mov_b32 v%d, 0" % vMc)
        e("s_mov_b32 s%d, 1" % sInit)
        e("s_nop 7")
        for f in fma_ops(cur):
            e(f)
        e("s_call_b64 s[38:39], K2_SLOW%d" % cur)
        e("s_branch K2_STEP%d" % ph)

    for ph in range(4):
        cur, nxt = ph & 1, 1 - (ph & 1)
        kslot, vslot, k2slot = (ph + 1) & 3, ph, (ph + 2) & 3
        a.label("K2_STEP%d" % ph)
        e("s_cmp_ge_u32 s%d, s%d" % (sJ, sKb1))
        e("s_cbranch_scc1 K2_SEG_END")
        e("s_cmp_eq_u32 s%d, s%d" % (sJ, sPend))
        e("s_cbranch_scc1 K2_FLAG%d" % ph)
        a.label("K2_FLAGBACK%d" % ph)
        e("s_barrier")
        e("s_cmp_ge_i32 s%d, s%d" % (sJ, sEnd))
        e("s_cbranch_scc1 K2_LAST%d" % ph)
        def rdn(m):
            if m < 16:
                return rdK(fr(m), kslot, m)
            if m < 32:
                return rdV(fr(m), vslot, m - 16)
            return rdK(fr(m), k2slot, m - 32)
        after = {n: [] for n in range(32)}
        for m in range(32):
            pu = prev_user[m]
            if pu >= 0:
                after[pu].append(m)
            else:
                after[pu + 32].append(m + 32)
        fx = softmax_ops(cur)
        fy = fmamax_ops(nxt)

        def share(lst, g, ng):
            return lst[(g * len(lst)) // ng:((g + 1) * len(lst)) // ng]
        issued = list(head_reads)
        for n in range(32):
            if n % 2 == 0:
                last = max(issued.index(n), issued.index(n + 1))
                e("s_waitcnt lgkmcnt(%d)" % (len(issued) - 1 - last))
            e(qk_mfma(n, nxt, fr(n)) if n < 16 else pv_mfma(n - 16, cur, fr(n)))
            for m in after[n]:
                e(rdn(m))
                issued.append(m)
            if n < 15:
                for f in share(fx, n, 15):
                    e(f)
            if 20 <= n < 31:
                for f in share(fy, n - 20, 11):
                    e(f)
            if n == 29:
                e("s_add_u32 s%d, s%d, 1" % (sJ, sJ))
                e("s_add_u32 s%d, s%d, 1" % (sT, sT))
            if n == 30:
                e("s_cmp_eq_u32 s%d, s%d" % (sJ, sJw))
        e("s_cbranch_vccnz K2_TOSLOW%d" % ph)
        e("s_cbranch_scc1 K2_TOSLOW%d" % ph)
        if ph == 3:
            e("s_branch K2_STEP0")
    for ph in range(4):
        cur, nxt = ph & 1, 1 - (ph & 1)
        a.label("K2_TOSLOW%d" % ph)
        e("s_call_b64 s[38:39], K2_SLOW%d" % nxt)
        e("s_branch K2_STEP%d" % ((ph + 1) & 3))
        a.label("K2_LAST%d" % ph)
        e("s_cmp_gt_i32 s%d, s%d" % (sJ, sEnd))
        e("s_cbranch_scc1 K2_IDLE%d" % ph)
        e("s_waitcnt lgkmcnt(0)")
        for n in range(5):
            e(rdV(vr(FR + 4 * n, 4), ph, n))
        for f in softmax_ops(cur):
            e(f)
        e("s_nop 1")
        for n in range(16):
            e("s_waitcnt lgkmcnt(%d)" % min(4, 15 - n))
            e(pv_mfma(n, cur, vr(FR + 4 * (n % 6), 4)))
            if n + 5 < 16:
                e(rdV(vr(FR + 4 * ((n + 5) % 6), 4), ph, n + 5))
        a.label("K2_IDLE%d" % ph)
        e("s_add_u32 s%d, s%d, 1" % (sJ, sJ))
        e("s_add_u32 s%d, s%d, 1" % (sT, sT))
        e("s_branch K2_STEP%d" % ((ph + 1) & 3))
    for sb in range(2):
        emit_slow(sb, "K2_SLOW%d" % sb, None)
    for ph in range(4):
        a.label("K2_FLAG%d" % ph)
        e("s_waitcnt vmcnt(0)")
        e("v_mov_b32 v%d, 1" % vT1)
        e("v_mov_b32 v%d, 0" % vT2)
        e("s_mov_b64 exec, 1")
        e("buffer_store_dword v%d, v%d, %s, s%d offen sc1" % (vT1, vT2, WSR, sFlag))
        e("s_mov_b64 exec, -1")
        e("s_mov_b32 s%d, -1" % sPend)
        e("s_branch K2_FLAGBACK%d" % ph)

    a.label("K2_SEG_END")
    stamp(a, 2)
    stamp(a, 6, real=True)
    e("s_nop 7")
    e("s_nop 7")
    e("v_mov_b32 v%d, v%d" % (vT1, vL))
    e("s_nop 1")
    e("v_permlane32_swap_b32 v%d, v%d" % (vL, vT1))
    e("s_nop 1")
    e("v_add_f32 v%d, v%d, v%d" % (vL, vL, vT1))
    e("s_cmp_eq_u32 s%d, 1" % sMode)
    e("s_cbranch_scc1 K2_PUBLISH")
    if YF:
        e("s_waitcnt lgkmcnt(0)")
        e("s_barrier")
    e("v_bfe_u32 v%d, v%d, 4, 5" % (vT1, vL16))
    e("v_lshlrev_b32 v%d, 2, v%d" % (vT1, vT1))
    e("s_lshl_b32 s%d, s%d, 7" % (sT0, sJw))
    e("s_add_u32 s%d, s%d, 0x%x" % (sT0, sT0, WS_G + 8192))
    e("buffer_load_dword v%d, v%d, %s, s%d offen" % (vThr, vT1, WSR, sT0))
    e("s_mul_i32 s%d, s%d, 288" % (sT3, sJw))
    e("s_lshl_b32 s%d, s%d, 4" % (sT1, sH))
    e("s_add_u32 s%d, s%d, s%d" % (sT3, sT3, sT1))
    e("s_lshl_b32 s%d, s%d, 10" % (sT3, sT3))
    e("s_add_u32 s%d, s%d, 0x%x" % (sT3, sT3, WS_CTX))
    e("s_cmp_eq_u32 s%d, 2" % sMode)
    e("s_cbranch_scc1 K2_COMBINE")
    e("v_rcp_f32 v%d, v%d" % (vT2, vL))
    e("s_waitcnt vmcnt(0)")
    e("v_mul_f32 v%d, v%d, v%d" % (vT2, vT2, vThr))

    def store_ctx(db):
        if YF:
            for r in range(8):
                e("v_cvt_pk_bf16_f32 v%d, v%d, v%d" % (O + 16 * db + r, O + 16 * db + 2 * r, O + 16 * db + 2 * r + 1))
            return
        tb = S[0] + 8 * (db & 3)
        for r in range(8):
            e("v_cvt_pk_bf16_f32 v%d, v%d, v%d" % (tb + r, O + 16 * db + 2 * r, O + 16 * db + 2 * r + 1))
        for t in range(2):
            e("buffer_store_dwordx4 %s, v%d, %s, s%d offen offset:%d %s" % (
                vr(tb + 4 * t, 4), vL16, WSR, sT3, ((db & 1) * 2 + t) * 1024, os.environ.get("K2ST", "sc1")))
        if db & 1:
            e("s_add_u32 s%d, s%d, 4096" % (sT3, sT3))

    for db in range(8):
        for r in range(16):
            e("v_mul_f32 v%d, v%d, v%d" % (O + 16 * db + r, O + 16 * db + r, vT2))
        store_ctx(db)
    a.label("K2_NEXT")
    stamp(a, 3)
    if YF:
        vW0, vW1, vB0 = vMc, vL, vThr
        sU, sNu, sY = sKb0, sKb1, sT3
        e("v_lshrrev_b32 v%d, 4, v%d" % (vT1, vL16))
        e("v_lshrrev_b32 v%d, 5, v%d" % (vT2, vT1))
        e("v_bfe_u32 v%d, v%d, 2, 2" % (vTm, vT1))
        e("v_lshl_add_u32 v%d, v%d, 2, v%d" % (vT2, vT2, vTm))
        e("v_lshlrev_b32 v%d, 7, v%d" % (vT2, vT2))
        e("v_bfe_u32 v%d, v%d, 4, 1" % (vTm, vT1))
        e("v_lshl_add_u32 v%d, v%d, 5, v%d" % (vT2, vTm, vT2))
        e("v_and_b32 v%d, 3, v%d" % (vTm, vT1))
        e("v_lshl_add_u32 v%d, v%d, 3, v%d" % (vT2, vTm, vT2))
        e("v_bfe_u32 v%d, v%d, 3, 1" % (vTm, vT1))
        e("v_lshl_add_u32 v%d, v%d, 6, v%d" % (vB0, vTm, vT2))
        e("s_mov_b32 s%d, 0" % sU)
        e("s_sub_u32 s%d, s%d, 7" % (sT0, sI))
        e("s_cmp_ge_u32 s%d, 7" % sI)
        e("s_cselect_b32 s%d, s%d, s%d" % (sNu, sT0, sI))
        e("s_lshl_b32 s%d, s%d, 11" % (sT0, sW))
        e("s_add_u32 s%d, s%d, %d" % (sT0, sT0, 4 * YU))
        e("v_add_u32 v%d, s%d, v%d" % (vT1, sT0, vL16))
        a.label("K2_YLOOP")
        e("s_barrier")
        e("s_cmp_lg_u32 s%d, 0" % sU)
        e("s_cbranch_scc1 K2_YNOA")
        e("ds_read_b128 %s, v%d" % (vr(O + 8, 4), vT1))
        e("ds_read_b128 %s, v%d offset:1024" % (vr(O + 12, 4), vT1))
        a.label("K2_YNOA")
        e("s_and_b32 s%d, s%d, 3" % (sT0, sU))
        e("s_mul_i32 s%d, s%d, %d" % (sT0, sT0, YU))
        e("v_add_u32 v%d, s%d, v%d" % (vW0, sT0, vB0))
        e("v_xor_b32 v%d, 64, v%d" % (vW1, vW0))
        e("s_mul_i32 s%d, s%d, 14" % (sY, sJw))
        e("s_lshl_b32 s%d, s%d, 1" % (sT0, sNu))
        e("s_add_u32 s%d, s%d, s%d" % (sY, sY, sT0))
        e("s_lshl_b32 s%d, s%d, 4" % (sY, sY))
        e("s_add_u32 s%d, s%d, s%d" % (sY, sY, sH))
        e("s_lshl_b32 s%d, s%d, 11" % (sY, sY))
        e("s_add_u32 s%d, s%d, 0x%x" % (sY, sY, WS_Y))
        NWF, DIST = 16, 6

        def wrd(m):
            nb, ks = m // 18, m % 18
            return ["ds_read_b64_tr_b16 %s, v%d offset:%d" % (vr(Q + 4 * (m % NWF) + 2 * u, 2), vW1 if nb else vW0, ks * 2048 + u * 1024)
                    for u in range(2)]

        def bfrag(ks):
            return vr(O + 16 * (ks >> 1) + 4 * (ks & 1), 4) if ks < 16 else vr(O + 8 + 4 * (ks - 16), 4)

        def ystore(nb):
            ops = []
            for r in range(8):
                ops.append("v_cvt_pk_bf16_f32 v%d, v%d, v%d" % (FR + 8 * nb + r, S[nb] + 2 * r, S[nb] + 2 * r + 1))
            for t in range(2):
                ops.append("buffer_store_dwordx4 %s, v%d, %s, s%d offen offset:%d sc1" % (vr(FR + 8 * nb + 4 * t, 4), vL16, WSR, sY, t * 1024))
            return ops
        for m in range(DIST):
            for f in wrd(m):
                e(f)
        st0 = ystore(0)
        for m in range(36):
            nb, ks = m // 18, m % 18
            e("s_waitcnt lgkmcnt(%d)" % (2 * min(DIST - 1, 35 - m)))
            e("v_mfma_f32_32x32x16_bf16 %s, %s, %s, %s" % (vr(S[nb], 16), vr(Q + 4 * (m % NWF), 4), bfrag(ks), "0" if ks == 0 else vr(S[nb], 16)))
            if m + DIST < 36:
                for f in wrd(m + DIST):
                    e(f)
            if 23 <= m < 33:
                e(st0[m - 23])
        e("s_add_u32 s%d, s%d, 32768" % (sY, sY))
        e("s_add_u32 s%d, s%d, 1" % (sU, sU))
        e("s_add_u32 s%d, s%d, 1" % (sNu, sNu))
        e("s_cmp_ge_u32 s%d, 7" % sNu)
        e("s_cselect_b32 s%d, 0, s%d" % (sNu, sNu))
        e("s_nop 7")
        for f in ystore(1):
            e(f)
        e("s_cmp_lt_u32 s%d, 7" % sU)
        e("s_cbranch_scc1 K2_YLOOP")
    e("s_branch K2_DONE")

    a.label("K2_PUBLISH")
    e("s_mov_b32 s%d, s%d" % (sQb, sI))
    e("s_mov_b32 s%d, 0" % sKb0)
    e("s_lshl_b32 s%d, s%d, 2" % (sKb1, sI))
    e("s_add_u32 s%d, s%d, 4" % (sKb1, sKb1))
    e("s_mov_b32 s%d, 0" % sMode)
    load_q()
    e("s_mov_b32 s%d, s%d" % (sT0, sPart))
    for c in range(32):
        if c and c % 4 == 0:
            e("s_add_u32 s%d, s%d, 4096" % (sT0, sT0))
        e("buffer_store_dwordx4 %s, v%d, %s, s%d offen offset:%d sc1" % (vr(O + 4 * c, 4), vL16, WSR, sT0, (c % 4) * 1024))
    e("s_add_u32 s%d, s%d, 4096" % (sT0, sT0))
    e("v_mov_b32 v%d, v%d" % (S[0], vMc))
    e("v_mov_b32 v%d, v%d" % (S[0] + 1, vL))
    e("v_mov_b32 v%d, 0" % (S[0] + 2))
    e("v_mov_b32 v%d, 0" % (S[0] + 3))
    e("buffer_store_dwordx4 %s, v%d, %s, s%d offen sc1" % (vr(S[0], 4), vL16, WSR, sT0))
    e("s_mov_b32 s%d, 2" % sPend)
    e("s_nop 1")
    e("s_branch K2_SEG")

    a.label("K2_COMBINE")
    e("v_mov_b32 v%d, 0" % vT2)
    e("s_mov_b32 s%d, 0x40000" % sSpin)
    a.label("K2_POLL")
    e("buffer_load_dword v%d, v%d, %s, s%d offen sc1" % (vT1, vT2, WSR, sFlag))
    e("s_waitcnt vmcnt(0)")
    e("v_readfirstlane_b32 s%d, v%d" % (sT0, vT1))
    e("s_cmp_eq_u32 s%d, 1" % sT0)
    e("s_cbranch_scc1 K2_POLL_OK")
    e("s_sleep 2")
    e("s_sub_u32 s%d, s%d, 1" % (sSpin, sSpin))
    e("s_cmp_lg_u32 s%d, 0" % sSpin)
    e("s_cbranch_scc1 K2_POLL")
    a.label("K2_POLL_OK")
    e("s_waitcnt lgkmcnt(0)")
    e("s_add_u32 s%d, s%d, 32768" % (sT0, sPart))
    e("buffer_load_dwordx4 %s, v%d, %s, s%d offen sc1" % (vr(FR, 4), vL16, WSR, sT0))
    e("s_mov_b32 s%d, s%d" % (sT0, sPart))

    def load_half(hf):
        for c in range(16):
            if c and c % 4 == 0:
                e("s_add_u32 s%d, s%d, 4096" % (sT0, sT0))
            e("buffer_load_dwordx4 %s, v%d, %s, s%d offen offset:%d sc1" % (vr(Q + 4 * c, 4), vL16, WSR, sT0, (c % 4) * 1024))
        e("s_add_u32 s%d, s%d, 4096" % (sT0, sT0))
    load_half(0)
    e("s_waitcnt vmcnt(16)")
    e("v_max_f32 v%d, v%d, v%d" % (vTm, vMc, FR))
    e("v_sub_f32 v%d, v%d, v%d" % (vT1, vMc, vTm))
    e("v_sub_f32 v%d, v%d, v%d" % (vT2, FR, vTm))
    e("v_exp_f32 v%d, v%d" % (vT1, vT1))
    e("v_exp_f32 v%d, v%d" % (vT2, vT2))
    e("s_nop 0")
    e("v_mul_f32 v%d, v%d, v%d" % (vL, vL, vT1))
    e("v_fma_f32 v%d, v%d, v%d, v%d" % (vL, FR + 1, vT2, vL))
    e("v_rcp_f32 v%d, v%d" % (vL, vL))
    e("s_nop 0")
    e("v_mul_f32 v%d, v%d, v%d" % (vL, vL, vThr))
    e("v_mul_f32 v%d, v%d, v%d" % (vT1, vT1, vL))
    e("v_mul_f32 v%d, v%d, v%d" % (vT2, vT2, vL))
    for hf in range(2):
        e("s_waitcnt vmcnt(0)")
        for r in range(64):
            e("v_mul_f32 v%d, v%d, v%d" % (O + 64 * hf + r, O + 64 * hf + r, vT1))
            e("v_fma_f32 v%d, v%d, v%d, v%d" % (O + 64 * hf + r, Q + r, vT2, O + 64 * hf + r))
        if hf == 0:
            load_half(1)
        for db in range(4 * hf, 4 * hf + 4):
            store_ctx(db)
    e("s_branch K2_NEXT")

    a.label("K2_DONE")
    if STAMP:
        e("s_waitcnt vmcnt(0)")
    stamp(a, 4); stamp(a, 7)
    if BW:
        e("s_waitcnt lgkmcnt(0)")
        e("s_add_u32 s78, s72, s60")
        e("s_addc_u32 s79, s73, 0")
    stamp(a, 9, real=True)
    stamp_dump(a, 10, SWS, sW, sT0, kidx=1, wave=int(os.environ.get("K2WAVE", "3")))
    e("s_endpgm")

    a.label("K2_AWAVE")
    if int(os.environ.get("APRIO", "1")):
        e("s_setprio %d" % int(os.environ.get("APRIO", "1")))
    AO, NM, AQ = 0, 16, 32
    AS = [40, 56]
    KF = [72, 80]
    VF = 88
    aL16, aDma, aK, aV, aTm, aT1, aT2, aG, aPF, aPFs, aPFm, aPFb, aPFd, aDm2 = range(96, 110)
    sWa, sQ32, sA, sKVA, sThr, sKsrc, sVsrc, sAsrc, sWoffA = 40, 41, 42, 43, 44, 45, 46, 47, 48
    sKt, sVt = 49, 50
    e("s_sub_u32 s%d, s%d, 4" % (sWa, sW))
    e("v_lshlrev_b32 v%d, 4, v2" % aL16)
    e("s_lshl_b32 s%d, s%d, 12" % (sWoff, sWa))
    e("s_lshl_b32 s%d, s%d, 11" % (sWoffA, sWa))
    e("v_add_u32 v%d, s%d, v%d" % (aDma, sWoff, aL16))
    e("v_add_u32 v%d, s%d, v%d" % (aDm2, sWoffA, aL16))
    e("v_add_u32 v%d, 0x%x, v%d" % (aK, LDS_A, aL16))
    e("v_lshrrev_b32 v3, 5, v2")
    e("v_bfe_u32 v4, v2, 2, 2")
    e("v_lshl_add_u32 v3, v3, 2, v4")
    e("v_lshlrev_b32 v3, 6, v3")
    e("v_bfe_u32 v4, v2, 4, 1")
    e("v_and_b32 v5, 1, v2")
    e("v_lshl_add_u32 v4, v4, 1, v5")
    e("v_bfe_u32 v5, v2, 1, 1")
    e("v_lshl_add_u32 v4, v4, 1, v5")
    e("v_lshl_add_u32 v3, v4, 3, v3")
    e("v_add_u32 v%d, 0x%x, v3" % (aV, LDS_A + 2048))
    e("s_sub_u32 s%d, 15, s%d" % (sT0, sI))
    e("s_cmp_eq_u32 s%d, 0" % sRole)
    e("s_cselect_b32 s%d, s%d, s%d" % (sT0, sI, sT0))
    e("s_lshl_b32 s%d, s%d, 2" % (sQ32, sT0))
    e("s_add_u32 s%d, s%d, s%d" % (sQ32, sQ32, sWa))
    e("s_lshl_b32 s%d, s%d, 18" % (sKVA, sH))
    e("s_add_u32 s%d, s%d, 0x%x" % (sKVA, sKVA, WS_KVA))
    e("s_mov_b32 s%d, %s" % (sThr, f32hex(THR)))
    e("v_and_b32 v3, 7, v2")
    e("s_lshl_b32 s%d, s%d, 5" % (sT1, sI))
    e("s_lshl_b32 s%d, s%d, 3" % (sT2, sWa))
    e("s_add_u32 s%d, s%d, s%d" % (sT1, sT1, sT2))
    e("v_add_u32 v3, s%d, v3" % sT1)
    e("v_lshlrev_b32 v3, 7, v3")
    e("s_mul_i32 s%d, s%d, %d" % (sT1, sRole, SPLIT))
    e("s_sub_u32 s%d, %d, s%d" % (sT1, SPLIT, sT1))
    e("s_lshl_b32 s%d, s%d, 15" % (sT1, sT1))
    e("v_add_u32 v3, s%d, v3" % sT1)
    e("s_lshl_b32 s%d, s%d, 2" % (sT1, sT0))
    e("s_add_u32 s%d, s%d, s%d" % (sT1, sT1, sWa))
    e("s_lshl_b32 s%d, s%d, 7" % (sT1, sT1))
    e("v_mov_b32 v4, s%d" % sT1)
    e("v_and_b32 v5, 8, v2")
    e("v_cmp_ne_u32 vcc, 0, v5")
    e("s_nop 1")
    e("v_cndmask_b32 v%d, v3, v4, vcc" % aPF)
    e("v_mov_b32 v3, 0x8000"); e("v_mov_b32 v4, 0x2000")
    e("v_cndmask_b32 v%d, v3, v4, vcc" % aPFs)
    e("v_mov_b32 v3, 0x1fffff"); e("v_mov_b32 v4, 0x3ffff")
    e("v_cndmask_b32 v%d, v3, v4, vcc" % aPFm)
    e("v_mov_b32 v3, s%d" % sKV); e("v_mov_b32 v4, s%d" % sKVA)
    e("v_cndmask_b32 v%d, v3, v4, vcc" % aPFb)

    def pf():
        return ["v_add_u32 v%d, v%d, v%d" % (aT2, aPFb, aPF),
                "v_add_u32 v%d, v%d, v%d" % (aPF, aPF, aPFs),
                "buffer_load_dword v%d, v%d, %s, 0 offen" % (aPFd, aT2, WSR),
                "v_and_b32 v%d, v%d, v%d" % (aPF, aPF, aPFm)]

    for _ in range(PFD):
        for f in pf():
            e(f)

    def dmaB(isV, slot):
        sSrc, sIdx = (sVsrc, sVt) if isV else (sKsrc, sKt)
        base = 0x10000 if isV else 0
        f = []
        if slot is None:
            f.append("s_and_b32 s%d, s%d, 3" % (sT0, sIdx))
            f.append("s_lshl_b32 s%d, s%d, 14" % (sT0, sT0))
            f.append("s_add_u32 s%d, s%d, s%d" % (sT0, sT0, sWoff))
            f.append("s_add_u32 m0, s%d, 0x%x" % (sT0, base))
        else:
            f.append("s_add_u32 m0, s%d, 0x%x" % (sWoff, base + slot * 16384))
        f.append("s_cmp_lt_u32 s%d, s%d" % (sIdx, sTT))
        f.append("s_cselect_b32 s%d, s%d, 0x7ff00000" % (sT1, sSrc))
        for p in range(4):
            f.append("buffer_load_dwordx4 v%d, %s, s%d offen offset:%d lds" % (aDma, WSR, sT1, p * 1024))
        f.append("s_add_u32 s%d, s%d, 1" % (sIdx, sIdx))
        f.append("s_add_u32 s%d, s%d, 0x8000" % (sSrc, sSrc))
        f.append("s_add_u32 s%d, s%d, 0x%x" % (sT1, sKV, 0x4000 if isV else 0))
        f.append("s_cmp_eq_u32 s%d, s%d" % (sIdx, sN1))
        f.append("s_cselect_b32 s%d, s%d, s%d" % (sSrc, sT1, sSrc))
        return f

    def dmaA(slot, oob=False):
        f = ["s_add_u32 m0, s%d, 0x%x" % (sWoffA, LDS_A + slot * 8192)]
        f.append("s_cmp_lt_u32 s%d, s%d" % (sAsrc, sA))
        f.append("s_cselect_b32 s%d, s%d, 0x7ff00000" % (sT1, sAsrc))
        for p in range(2):
            f.append("buffer_load_dwordx4 v%d, %s, s%d offen offset:%d lds" % (aDm2, WSR, sT1, p * 1024))
        f.append("s_add_u32 s%d, s%d, 0x2000" % (sAsrc, sAsrc))
        return f

    e("s_lshl_b32 s%d, s%d, 15" % (sKsrc, sKb0a))
    e("s_add_u32 s%d, s%d, s%d" % (sKsrc, sKsrc, sKV))
    e("s_add_u32 s%d, s%d, 0x4000" % (sVsrc, sKsrc))
    e("s_mov_b32 s%d, 0" % sKt)
    e("s_mov_b32 s%d, 0" % sVt)
    e("s_mov_b32 s%d, s%d" % (sAsrc, sKVA))
    e("s_add_u32 s%d, s%d, 0x40000" % (sA, sKVA))
    e("s_lshl_b32 s%d, s%d, 6" % (sT0, sH))
    e("s_add_u32 s%d, s%d, s%d" % (sT0, sT0, sQ32))
    e("s_lshl_b32 s%d, s%d, 11" % (sT0, sT0))
    e("s_add_u32 s%d, s%d, 0x%x" % (sT0, sT0, WS_QA))
    for s in range(2):
        e("buffer_load_dwordx4 %s, v%d, %s, s%d offen offset:%d" % (vr(AQ + 4 * s, 4), aL16, WSR, sT0, s * 1024))
    e("v_and_b32 v3, 31, v2")
    e("v_lshlrev_b32 v3, 2, v3")
    e("s_lshl_b32 s%d, s%d, 7" % (sT0, sQ32))
    e("s_add_u32 s%d, s%d, 0x%x" % (sT0, sT0, WS_G))
    e("buffer_load_dword v%d, v3, %s, s%d offen" % (aG, WSR, sT0))
    pro = dmaB(0, 0) + dmaA(0)
    pro += dmaB(0, 1) + dmaA(1) + dmaB(1, 0)
    pro += ["s_nop 0"] * 0
    pro2 = dmaB(0, 2) + dmaA(2) + dmaB(1, 1)
    for f in pro + pro2:
        e(f)
    for r in range(16):
        e("v_mov_b32 v%d, 0" % (AO + r))

    def kread(kf, slot, tile):
        return ["ds_read_b128 %s, v%d offset:%d" % (vr(KF[kf] + 4 * s, 4), aK, slot * 8192 + tile * 4096 + s * 1024) for s in range(2)]

    def vread(slot, tile):
        return ["ds_read_b64_tr_b16 %s, v%d offset:%d" % (vr(VF + 4 * t + 2 * u, 2), aV, slot * 8192 + tile * 4096 + t * 1024 + u * 512)
                for t in range(2) for u in range(2)]

    def qk(sb, kf, cz=False):
        return ["v_mfma_f32_32x32x16_bf16 %s, %s, %s, %s" % (vr(AS[sb], 16), vr(KF[kf], 4), vr(AQ, 4), "0" if cz else vr(NM, 16)),
                "v_mfma_f32_32x32x16_bf16 %s, %s, %s, %s" % (vr(AS[sb], 16), vr(KF[kf] + 4, 4), vr(AQ + 4, 4), vr(AS[sb], 16))]

    def amaxops(sb):
        b = AS[sb]
        ops = ["v_max3_f32 v%d, v%d, v%d, v%d" % (aTm, b, b + 1, b + 2)]
        for k in range(3, 15, 2):
            ops.append("v_max3_f32 v%d, v%d, v%d, v%d" % (aTm, aTm, b + k, b + k + 1))
        ops.append("v_max_f32 v%d, v%d, v%d" % (aTm, aTm, b + 15))
        return ops

    def xhalf_max():
        e("v_mov_b32 v%d, v%d" % (aT1, aTm))
        e("s_nop 1")
        e("v_permlane32_swap_b32 v%d, v%d" % (aTm, aT1))
        e("s_nop 1")
        e("v_max_f32 v%d, v%d, v%d" % (aTm, aTm, aT1))

    aslow = []
    sAi = 51
    e("s_mov_b32 s%d, 0" % sAi)
    e("s_mov_b32 s52, 0x7ff00000")
    a.label("K2A_LOOP")
    for ph in range(4):
        if ph == 0:
            e("s_waitcnt vmcnt(14) lgkmcnt(0)")
        elif ph == 1:
            e("s_waitcnt vmcnt(15) lgkmcnt(0)")
        else:
            e("s_waitcnt vmcnt(16) lgkmcnt(0)")
        e("s_barrier")
        dm = dmaB(0, (ph + 3) & 3) + dmaA((ph + 3) & 3) + dmaB(1, (ph + 2) & 3) + pf()
        if ph == 0:
            lab = a.newlabel("K2A_NOINIT")
            e("s_cmp_lg_u32 s%d, 0" % sAi)
            e("s_cbranch_scc1 %s" % lab)
            for f in kread(0, 0, 0) + kread(1, 0, 1):
                e(f)
            e("s_waitcnt lgkmcnt(2)")
            for m in qk(0, 0, cz=True):
                e(m)
            e("s_nop 7")
            e("s_nop 7")
            for op in amaxops(0):
                e(op)
            xhalf_max()
            for r in range(16):
                e("v_sub_f32 v%d, v%d, v%d" % (AS[0] + r, AS[0] + r, aTm))
                e("v_sub_f32 v%d, 0, v%d" % (NM + r, aTm))
            e("s_nop 1")
            a.label(lab)
        half = (len(dm) + 1) // 2
        if os.environ.get("NOA"):
            for f in dm:
                e(f)
            continue
        if os.environ.get("NODMA"):
            dm = [f.replace("s%d offen offset" % sT1, "s52 offen offset") for f in dm]
        for tl in range(2):
            cur, nxt = tl, 1 - tl
            b = AS[cur]
            dmi = dm[:half] if tl == 0 else dm[half:]
            e("s_waitcnt lgkmcnt(0)")
            m = qk(nxt, nxt)
            e(m[0])
            for f in vread(ph, tl):
                e(f)
            e(m[1])
            for f in kread(cur, (ph + 1) & 3, tl):
                e(f)
            k2 = 0
            for i in range(16 + 2):
                if i < 16:
                    e("v_exp_f32 v%d, v%d" % (b + i, b + i))
                k = i - 2
                if k >= 0 and (k & 1):
                    e("v_cvt_pk_bf16_f32 v%d, v%d, v%d" % (b + (k >> 1), b + k - 1, b + k))
                tgt = ((i + 1) * len(dmi)) // 18
                while k2 < tgt:
                    e(dmi[k2]); k2 += 1
            mo = amaxops(nxt)
            e(mo[0])
            e("s_waitcnt lgkmcnt(2)")
            e("v_mfma_f32_32x32x16_bf16 %s, %s, %s, %s" % (vr(AO, 16), vr(VF, 4), vr(b, 4), vr(AO, 16)))
            for op in mo[1:5]:
                e(op)
            e("v_mfma_f32_32x32x16_bf16 %s, %s, %s, %s" % (vr(AO, 16), vr(VF + 4, 4), vr(b + 4, 4), vr(AO, 16)))
            for op in mo[5:]:
                e(op)
            e("v_cmp_lt_f32 vcc, s%d, v%d" % (sThr, aTm))
            e("s_cbranch_vccnz K2A_SLOW%d_%d" % (ph, tl))
            a.label("K2A_BACK%d_%d" % (ph, tl))
            aslow.append((ph, tl, nxt))
    e("s_add_u32 s%d, s%d, 4" % (sAi, sAi))
    e("s_cmp_lt_u32 s%d, 32" % sAi)
    e("s_cbranch_scc1 K2A_LOOP")
    e("s_nop 7")
    e("s_nop 7")
    e("v_mov_b32 v%d, v%d" % (aT1, AO + 12))
    e("v_mov_b32 v%d, v%d" % (aT2, AO + 12))
    e("s_nop 1")
    e("v_permlane32_swap_b32 v%d, v%d" % (aT1, aT2))
    e("s_nop 1")
    e("v_rcp_f32 v%d, v%d" % (aT2, aT2))
    e("s_nop 0")
    e("v_mul_f32 v%d, v%d, v%d" % (aT2, aT2, aG))
    for r in range(16):
        e("v_mul_f32 v%d, v%d, v%d" % (AO + r, AO + r, aT2))
    e("s_mov_b32 exec_lo, 0")
    for r in range(12, 16):
        e("v_mov_b32 v%d, 0" % (AO + r))
    e("s_mov_b32 exec_lo, -1")
    for r in range(8):
        e("v_cvt_pk_bf16_f32 v%d, v%d, v%d" % (AS[0] + r, AO + 2 * r, AO + 2 * r + 1))
    if not YF:
        e("s_mul_i32 s%d, s%d, 288" % (sT0, sQ32))
        e("s_lshl_b32 s%d, s%d, 1" % (sT1, sH))
        e("s_add_u32 s%d, s%d, s%d" % (sT0, sT0, sT1))
        e("s_add_u32 s%d, s%d, 256" % (sT0, sT0))
        e("s_lshl_b32 s%d, s%d, 10" % (sT0, sT0))
        e("s_add_u32 s%d, s%d, 0x%x" % (sT0, sT0, WS_CTX))
        for t in range(2):
            e("buffer_store_dwordx4 %s, v%d, %s, s%d offen offset:%d" % (vr(AS[0] + 4 * t, 4), aL16, WSR, sT0, t * 1024))
    a.label("K2A_TAIL")
    e("s_cmp_gt_u32 s%d, s%d" % (sAi, sTT))
    e("s_cbranch_scc1 K2A_Y")
    e("s_waitcnt vmcnt(8)")
    e("s_barrier")
    for f in dmaB(0, None) + dmaB(1, None):
        e(f)
    e("s_add_u32 s%d, s%d, 1" % (sAi, sAi))
    e("s_branch K2A_TAIL")
    a.label("K2A_Y")
    if YF:
        SWB, SWA = 64, 68
        yV = 110
        sU, sNu, sRowB, sRowA = sKsrc, sVsrc, sAsrc, sA
        e("s_mov_b32 s68, s66")
        e("s_mov_b32 s69, s67")
        e("s_mov_b32 s70, 0x%x" % NB['wo'])
        e("s_mov_b32 s71, 0x20000")
        e("s_mov_b32 s66, 0x%x" % NB['wob'])
        e("s_mov_b32 s67, 0x20000")
        e("v_lshrrev_b32 v2, 4, v%d" % aL16)
        e("v_lshrrev_b32 v3, 3, v2")
        e("v_and_b32 v4, 7, v2")
        e("v_bfe_u32 v5, v2, 4, 1")
        e("v_lshlrev_b32 v5, 2, v5")
        e("v_xor_b32 v4, v4, v5")
        e("v_lshlrev_b32 v4, 4, v4")
        e("v_mul_u32_u24 v3, 896, v3")
        e("v_add_u32 v%d, v3, v4" % yV)
        for p in range(1, 4):
            e("v_add_u32 v%d, %d, v%d" % (yV + p, p * (8 * 896 - 1024), yV))
        e("s_lshl_b32 s%d, s%d, 8" % (sRowB, sH))
        e("s_lshl_b32 s%d, s%d, 6" % (sT0, sWa))
        e("s_add_u32 s%d, s%d, s%d" % (sRowB, sRowB, sT0))
        e("s_mul_i32 s%d, s%d, 896" % (sRowB, sRowB))
        e("s_mul_i32 s%d, s%d, 28" % (sRowA, sH))
        e("s_lshl_b32 s%d, s%d, 3" % (sT0, sWa))
        e("s_add_u32 s%d, s%d, s%d" % (sRowA, sRowA, sT0))
        e("s_mul_i32 s%d, s%d, 896" % (sRowA, sRowA))
        e("s_sub_u32 s%d, s%d, 7" % (sT0, sI))
        e("s_cmp_ge_u32 s%d, 7" % sI)
        e("s_cselect_b32 s%d, s%d, s%d" % (sNu, sT0, sI))

        def yunit(slot):
            e("s_lshl_b32 s%d, s%d, 7" % (sT0, sNu))
            e("s_lshl_b32 s%d, s%d, 13" % (sT2, sWa))
            for g in range(2):
                e("s_add_u32 m0, s%d, %d" % (sT2, slot * YU + g * 4096))
                e("s_add_u32 s%d, s%d, s%d" % (sT1, sRowB, sT0))
                if g:
                    e("s_add_u32 s%d, s%d, %d" % (sT1, sT1, 32 * 896))
                for p in range(4):
                    e("buffer_load_dwordx4 v%d, %s, s%d offen offset:%d lds" % (yV + p, sr(SWB, 4), sT1, p * 1024))
            e("s_lshl_b32 s%d, s%d, 10" % (sT2, sWa))
            e("s_add_u32 m0, s%d, %d" % (sT2, slot * YU + 32768))
            e("s_add_u32 s%d, s%d, s%d" % (sT1, sRowA, sT0))
            e("buffer_load_dwordx4 v%d, %s, s%d offen lds" % (yV, sr(SWA, 4), sT1))
            e("s_add_u32 s%d, s%d, 1" % (sNu, sNu))
            e("s_cmp_ge_u32 s%d, 7" % sNu)
            e("s_cselect_b32 s%d, 0, s%d" % (sNu, sNu))
        e("s_waitcnt vmcnt(0) lgkmcnt(0)")
        e("s_barrier")
        for u in range(4):
            yunit(u)
        e("s_lshl_b32 s%d, s%d, 11" % (sT0, sWa))
        e("s_add_u32 s%d, s%d, %d" % (sT0, sT0, 4 * YU))
        e("v_add_u32 v%d, s%d, v%d" % (aT1, sT0, aL16))
        e("ds_write_b128 v%d, %s" % (aT1, vr(AS[0], 4)))
        e("ds_write_b128 v%d, %s offset:1024" % (aT1, vr(AS[0] + 4, 4)))
        issued = 4
        for u in range(7):
            e("s_waitcnt vmcnt(%d) lgkmcnt(0)" % (9 * (issued - u - 1)))
            e("s_barrier")
            if u >= 1 and issued < 7:
                yunit(issued & 3)
                issued += 1
    e("s_branch K2_DONE" if BW else "s_branch K2_END")
    for ph, tl, sb in aslow:
        a.label("K2A_SLOW%d_%d" % (ph, tl))
        e("s_nop 7")
        e("s_nop 7")
        xhalf_max()
        e("v_max_f32 v%d, 0, v%d" % (aTm, aTm))
        e("v_sub_f32 v%d, 0, v%d" % (aT1, aTm))
        e("v_exp_f32 v%d, v%d" % (aT1, aT1))
        for r in range(16):
            e("v_sub_f32 v%d, v%d, v%d" % (AS[sb] + r, AS[sb] + r, aTm))
            e("v_sub_f32 v%d, v%d, v%d" % (NM + r, NM + r, aTm))
            e("v_mul_f32 v%d, v%d, v%d" % (AO + r, AO + r, aT1))
        e("s_nop 1")
        e("s_branch K2A_BACK%d_%d" % (ph, tl))
    a.label("K2_END")
    e("s_endpgm")
    return kernel_desc(name, 256, 96, 256)
```

```python
import os
from asmlib import *
from layout import *
WS_Y = 128 << 20
LAUNCH = "; @launch kernel=k3_red_kernel grid=(224,1,1) block=(256,1,1) lds=0"


def gen_k3r(a, name="k3_red_kernel"):
    e = a.e
    SWS, SO = 4, 8
    sW, sIt, sQ, sNb, sT0, sT1, sLo, sHi = 12, 13, 14, 15, 16, 17, 18, 19
    D, ACC = 32, 0
    vL16, vT = 16, 17
    a.raw(".p2align 8")
    a.label(name)
    e("s_cmp_ge_u32 s2, 224")
    e("s_cbranch_scc1 K3R_END")
    stamp(a, 0)
    stamp(a, 8, real=True)
    e("s_load_dwordx2 s[36:37], s[0:1], 96")
    e("s_load_dwordx2 s[38:39], s[0:1], 80")
    e("v_lshrrev_b32 v1, 6, v0")
    e("v_and_b32 v2, 63, v0")
    e("v_readfirstlane_b32 s%d, v1" % sW)
    e("v_lshlrev_b32 v%d, 4, v2" % vL16)
    e("s_lshl_b32 s%d, s2, 2" % sIt)
    e("s_nop 2")
    e("s_add_u32 s%d, s%d, s%d" % (sIt, sIt, sW))
    e("s_lshl_b32 s%d, s%d, 15" % (sT0, sIt))
    e("s_add_u32 s%d, s%d, 0x%x" % (sT0, sT0, WS_Y))
    e("s_waitcnt lgkmcnt(0)")
    for (srd, p, nb) in ((SWS, 36, WS_BYTES), (SO, 38, NB['out'])):
        e("s_mov_b32 s%d, s%d" % (srd, p))
        e("s_mov_b32 s%d, s%d" % (srd + 1, p + 1))
        e("s_mov_b32 s%d, 0x%x" % (srd + 2, nb))
        e("s_mov_b32 s%d, 0x20000" % (srd + 3))
    for c in range(32):
        if c and c % 4 == 0:
            e("s_add_u32 s%d, s%d, 4096" % (sT0, sT0))
        e("buffer_load_dwordx4 %s, v%d, %s, s%d offen offset:%d" % (vr(D + 4 * c, 4), vL16, sr(SWS, 4), sT0, (c % 4) * 1024))
    e("s_mul_i32 s%d, s%d, 4682" % (sQ, sIt))
    e("s_lshr_b32 s%d, s%d, 16" % (sQ, sQ))
    e("s_mul_i32 s%d, s%d, 14" % (sT1, sQ))
    e("s_sub_u32 s%d, s%d, s%d" % (sNb, sIt, sT1))
    e("s_mul_i32 s%d, s%d, %d" % (sT0, sQ, 32 * 896))
    e("s_lshl_b32 s%d, s%d, 6" % (sT1, sNb))
    e("s_add_u32 s%d, s%d, s%d" % (sT0, sT0, sT1))
    e("v_and_b32 v%d, 31, v2" % (vT + 1))
    e("v_mul_u32_u24 v%d, 896, v%d" % (vT + 1, vT + 1))
    e("v_lshrrev_b32 v%d, 5, v2" % vT)
    e("v_lshl_add_u32 v%d, v%d, 3, v%d" % (vT, vT, vT + 1))
    for h in range(16):
        e("s_waitcnt vmcnt(%d)" % (2 * (15 - h)))
        for r in range(8):
            src = D + 8 * h + r
            if h == 0:
                e("v_lshlrev_b32 v%d, 16, v%d" % (ACC + 2 * r, src))
                e("v_and_b32 v%d, 0xffff0000, v%d" % (ACC + 2 * r + 1, src))
            else:
                e("v_lshlrev_b32 v%d, 16, v%d" % (vT + 2, src))
                e("v_and_b32 v%d, 0xffff0000, v%d" % (vT + 3, src))
                e("v_add_f32 v%d, v%d, v%d" % (ACC + 2 * r, ACC + 2 * r, vT + 2))
                e("v_add_f32 v%d, v%d, v%d" % (ACC + 2 * r + 1, ACC + 2 * r + 1, vT + 3))
    for r in range(8):
        e("v_cvt_pk_bf16_f32 v%d, v%d, v%d" % (D + r, ACC + 2 * r, ACC + 2 * r + 1))
    for i in range(4):
        e("buffer_store_dwordx2 %s, v%d, %s, s%d offen offset:%d" % (vr(D + 2 * i, 2), vT, sr(SO, 4), sT0, i * 16))
    if STAMP:
        e("s_waitcnt vmcnt(0)")
    for k in range(1, 8):
        stamp(a, k)
    stamp(a, 9, real=True)
    stamp_dump(a, 10, SWS, sW, sT0, kidx=2, wave=0)
    a.label("K3R_END")
    e("s_endpgm")
    return kernel_desc(name, 160, 96, 160)
```

```python
import sys
sys.path.insert(0, "dev")
from asmlib import *
from layout import *
import k1

NAME = "gated_mix__mha_block__compressed_kv_cla__prompt"
HEADER = open("cdna_kernels/%s.s.ref" % NAME).read().split("; Override launch")[0]


def build(which):
    launches = []
    a = Asm()
    a.raw('.amdgcn_target "amdgcn-amd-amdhsa--gfx950"')
    a.raw(".text")
    descs = []
    if "k1" in which:
        descs.append(k1.gen_k1(a))
        launches.append(k1.LAUNCH)
    if "k2" in which:
        import k2
        a.vq = []
        descs.append(k2.gen_k2(a))
        launches.append(k2.LAUNCH)
    if "k2a" in which:
        import k2a
        a.vq = []
        descs.append(k2a.gen_k2a(a))
        launches.append(k2a.LAUNCH)
    if "k3" in which:
        import k3
        a.vq = []
        descs.append(k3.gen_k3(a))
        launches.append(k3.LAUNCH)
    if "k3r" in which:
        import k3r
        descs.append(k3r.gen_k3r(a))
        launches.append(k3r.LAUNCH)
    return HEADER + "\n".join(launches) + "\n" + a.text() + "".join(descs)


if __name__ == "__main__":
    which = sys.argv[1].split(",")
    out = sys.argv[2] if len(sys.argv) > 2 else "cdna_kernels/%s.s" % NAME
    open(out, "w").write(build(which))
    print("wrote", out)
```

```python
import struct, os
from asmlib import *
from layout import *

LAUNCH = "; @launch kernel=k1_proj_kernel grid=(256,1,1) block=(512,1,1) lds=163840"
STF = os.environ.get("K1ST", "sc1")
ROT1 = int(os.environ.get("ROT1", "3"))
NOROT0 = int(os.environ.get("NOROT0", "0"))
ROT2 = int(os.environ.get("ROT2", "3"))


def f32hex(x):
    return "0x%08x" % struct.unpack("<I", struct.pack("<f", x))[0]


def gen_k1(a, name="k1_proj_kernel"):
    e = a.e
    SXs, SWs, SWS = {1: 4, 2: 12}, {1: 8, 2: 16}, 20
    sW, sWr, sWc = 24, 25, 26
    sXslot, sXrd, sDelta = 27, 28, 29
    sWk, sXk = 30, 31
    sWoffX, sWoffW = 32, 33
    sLoop = 34
    sT0, sT1, sT2, sT3 = 35, 36, 37, 38
    sOut = 39
    sXT, sWT = 40, 41
    sRot = {1: 42, 2: 43}
    sWstep = {1: 44, 2: 45}
    sX, sJ, sH, sIsV, sRb1 = 46, 47, 48, 49, 50
    sRb2, sC32, sHW, sLdw2, sIsA, sSpare, sCA = 51, 68, 69, 70, 71, 94, 95
    ACC = 0
    XF = [128, 176]
    WF = [144, 192]
    vXa = 224
    vWa = {1: 226, 2: 234}
    vOX = {1: 240, 2: 244}
    vOW = {1: 248, 2: 250}
    vSt, vLane = 252, 253
    vT = 254
    L = "v%d" % vLane
    t = 128
    NCOL = {1: 256, 2: 192}
    NHS = {1: 32, 2: 14}
    WSR = sr(SWS, 4)

    a.raw(".p2align 8")
    a.label(name)
    e("s_cmp_ge_u32 s2, 256")
    e("s_cbranch_scc1 K1_END")
    stamp(a, 0)
    stamp(a, 8, real=True)
    e("s_load_dwordx4 s[52:55], s[0:1], 0")
    e("s_load_dwordx4 s[56:59], s[0:1], 32")
    e("s_load_dwordx4 s[60:63], s[0:1], 48")
    e("s_load_dwordx2 s[64:65], s[0:1], 72")
    e("s_load_dwordx2 s[66:67], s[0:1], 96")
    e("v_and_b32 %s, 63, v0" % L)
    e("v_lshrrev_b32 v%d, 6, v0" % t)
    e("s_and_b32 s%d, s2, 7" % sX)
    e("v_readfirstlane_b32 s%d, v%d" % (sW, t))
    e("s_lshr_b32 s%d, s2, 3" % sJ)
    e("s_and_b32 s%d, s%d, 7" % (sRb1, sJ))
    e("s_lshr_b32 s%d, s%d, 3" % (sT0, sJ))
    e("s_and_b32 s%d, s%d, 1" % (sT1, sT0))
    e("s_lshl_b32 s%d, s%d, 1" % (sH, sX))
    e("s_add_u32 s%d, s%d, s%d" % (sH, sH, sT1))
    e("s_lshr_b32 s%d, s%d, 1" % (sIsV, sT0))
    e("s_lshr_b32 s%d, s%d, %d" % (sT1, sRb1, int(os.environ.get("ROTSH", "1"))))
    e("s_add_u32 s%d, s%d, s%d" % (sRot[1], sT0, sT1))
    e("s_and_b32 s%d, s%d, %d" % (sRot[1], sRot[1], ROT1))
    e("s_and_b32 s%d, s%d, 3" % (sWr, sW))
    e("s_lshr_b32 s%d, s%d, 2" % (sWc, sW))
    e("s_lshl_b32 s%d, s%d, 12" % (sWoffX, sW))
    e("s_lshl_b32 s%d, s%d, 11" % (sWoffW, sW))
    e("s_mul_i32 s%d, s%d, 30" % (sT0, sX))
    e("s_add_u32 s%d, s%d, s%d" % (sT0, sT0, sJ))
    e("s_cmp_ge_u32 s%d, 30" % sJ)
    e("s_cselect_b32 s%d, 1, 0" % sSpare)
    e("s_cselect_b32 s%d, 0, s%d" % (sT0, sT0))
    e("s_and_b32 s%d, s%d, 7" % (sRb2, sT0))
    e("s_lshr_b32 s%d, s%d, 3" % (sT0, sT0))
    e("s_lshr_b32 s%d, s%d, 1" % (sT1, sRb2))
    e("s_add_u32 s%d, s%d, s%d" % (sRot[2], sT0, sT1))
    e("s_and_b32 s%d, s%d, %d" % (sRot[2], sRot[2], ROT2))
    e("s_lshl_b32 s%d, s%d, 1" % (sRot[2], sRot[2]))
    e("s_cmp_ge_u32 s%d, 22" % sT0)
    e("s_cselect_b32 s%d, 1, 0" % sIsA)
    e("s_cselect_b32 s%d, 28, 32" % sHW)
    e("s_movk_i32 s%d, 8192" % sLdw2)
    e("s_cselect_b32 s%d, 2688, s%d" % (sLdw2, sLdw2))
    e("s_cselect_b32 s%d, 22, 0" % sT1)
    e("s_sub_u32 s%d, s%d, s%d" % (sT0, sT0, sT1))
    e("s_mul_i32 s%d, s%d, 6" % (sC32, sT0))
    e("s_lshl_b32 s%d, s%d, 5" % (sWstep[2], sLdw2))
    e("s_mov_b32 s%d, 0x40000" % sWstep[1])
    e("s_mov_b32 s%d, %s" % (sCA, f32hex(LOG2E * 28 ** -0.5)))
    e("v_lshrrev_b32 v%d, 4, %s" % (t + 4, L))
    e("v_and_b32 v%d, 7, %s" % (t + 1, L))
    e("v_xor_b32 v%d, v%d, v%d" % (t + 1, t + 1, t + 4))
    for g, sRb, ldx in ((1, sRb1, 2048), (2, sRb2, 896)):
        e("v_lshrrev_b32 v%d, 3, %s" % (t, L))
        e("s_lshl_b32 s%d, s%d, 5" % (sT0, sW))
        e("s_lshl_b32 s%d, s%d, 8" % (sT1, sRb))
        e("s_add_u32 s%d, s%d, s%d" % (sT0, sT0, sT1))
        e("v_add_u32 v%d, s%d, v%d" % (t, sT0, t))
        e("v_mul_u32_u24 v%d, %d, v%d" % (t, ldx, t))
        e("v_lshl_add_u32 v%d, v%d, 4, v%d" % (vOX[g], t + 1, t))
        e("v_add_u32 v%d, %d, v%d" % (vOX[g] + 1, 8 * ldx - 1024, vOX[g]))
        e("v_xor_b32 v%d, 64, v%d" % (t, vOX[g]))
        e("v_add_u32 v%d, %d, v%d" % (vOX[g] + 2, 16 * ldx, t))
        e("v_add_u32 v%d, %d, v%d" % (vOX[g] + 3, 8 * ldx - 1024, vOX[g] + 2))
    e("s_bfe_u32 s%d, s%d, 0x10001" % (sT2, sW))
    e("s_lshl_b32 s%d, s%d, 9" % (sT3, sH))
    for q in range(2):
        e("v_lshrrev_b32 v%d, 5, %s" % (t, L))
        if q:
            e("v_add_u32 v%d, 2, v%d" % (t, t))
        e("v_and_b32 v%d, 31, %s" % (t + 1, L))
        e("v_lshlrev_b32 v%d, 2, v%d" % (t + 2, t))
        e("v_xor_b32 v%d, v%d, v%d" % (t + 1, t + 1, t + 2))
        e("v_xor_b32 v%d, s%d, v%d" % (t + 1, sT2, t + 1))
        e("s_lshl_b32 s%d, s%d, 2" % (sT0, sW))
        e("v_add_u32 v%d, s%d, v%d" % (t, sT0, t))
        e("v_lshlrev_b32 v%d, 13, v%d" % (t, t))
        e("v_lshl_add_u32 v%d, v%d, 4, v%d" % (t, t + 1, t))
        e("v_add_u32 v%d, s%d, v%d" % (t, sT3, t))
        e("v_subrev_u32 v%d, %d, v%d" % (vOW[1] + q, 1024 * q, t))
    e("s_movk_i32 s%d, 2731" % sT1)
    e("s_lshl_b32 s%d, s%d, 7" % (sT0, sW))
    for q in range(2):
        e("v_add_u32 v%d, s%d, %s" % (t, sT0, L))
        if q:
            e("v_add_u32 v%d, 64, v%d" % (t, t))
        e("v_mul_lo_u32 v%d, v%d, s%d" % (t + 1, t, sT1))
        e("v_lshrrev_b32 v%d, 16, v%d" % (t + 1, t + 1))
        e("v_mul_u32_u24 v%d, 24, v%d" % (t + 2, t + 1))
        e("v_sub_u32 v%d, v%d, v%d" % (t + 2, t, t + 2))
        e("v_lshlrev_b32 v%d, 1, v%d" % (t + 3, t + 1))
        e("v_and_b32 v%d, 4, v%d" % (t + 3, t + 3))
        e("v_xor_b32 v%d, v%d, v%d" % (t + 2, t + 2, t + 3))
        e("v_bfe_u32 v%d, v%d, 3, 1" % (t + 3, t + 1))
        e("v_xor_b32 v%d, v%d, v%d" % (t + 2, t + 2, t + 3))
        e("v_lshrrev_b32 v%d, 2, v%d" % (t + 3, t + 2))
        e("v_add_u32 v%d, s%d, v%d" % (t + 3, sC32, t + 3))
        e("v_mul_lo_u32 v%d, v%d, s%d" % (t + 3, t + 3, sHW))
        e("v_and_b32 v%d, 3, v%d" % (t + 2, t + 2))
        e("v_lshl_add_u32 v%d, v%d, 3, v%d" % (t + 3, t + 2, t + 3))
        e("v_mul_lo_u32 v%d, v%d, s%d" % (t + 1, t + 1, sLdw2))
        e("v_lshl_add_u32 v%d, v%d, 1, v%d" % (t + 1, t + 3, t + 1))
        e("v_subrev_u32 v%d, %d, v%d" % (vOW[2] + q, 1024 * q, t + 1))
    e("s_cmp_lt_u32 s%d, 6" % sW)
    e("s_cbranch_scc1 K1_W2OK")
    e("v_mov_b32 v%d, 0x7ff00000" % vOW[2])
    e("v_mov_b32 v%d, 0x7ff00000" % (vOW[2] + 1))
    a.label("K1_W2OK")
    e("s_waitcnt lgkmcnt(0)")

    def srd(base, plo, nbytes):
        e("s_mov_b32 s%d, s%d" % (base, plo))
        e("s_mov_b32 s%d, s%d" % (base + 1, plo + 1))
        e("s_mov_b32 s%d, 0x%x" % (base + 2, nbytes))
        e("s_mov_b32 s%d, 0x20000" % (base + 3))
    srd(SXs[1], 56, NB['ckv'])
    srd(SXs[2], 52, NB['x'])
    srd(SWS, 66, WS_BYTES)
    e("s_cmp_eq_u32 s%d, 0" % sIsV)
    e("s_cselect_b32 s%d, s60, s62" % SWs[1])
    e("s_cselect_b32 s%d, s61, s63" % (SWs[1] + 1))
    e("s_mov_b32 s%d, %d" % (SWs[1] + 2, NB['wuk']))
    e("s_mov_b32 s%d, 0x20000" % (SWs[1] + 3))
    e("s_cmp_eq_u32 s%d, 0" % sIsA)
    e("s_cselect_b32 s%d, s58, s54" % SWs[2])
    e("s_cselect_b32 s%d, s59, s55" % (SWs[2] + 1))
    e("s_mov_b32 s%d, %d" % (SWs[2] + 2, NB['wqkv']))
    e("s_cselect_b32 s%d, %d, s%d" % (SWs[2] + 2, NB['wq'], SWs[2] + 2))
    e("s_mov_b32 s%d, 0x20000" % (SWs[2] + 3))
    e("s_mov_b32 s%d, 0x10000" % sXslot)
    e("s_mov_b32 s%d, 0" % sXrd)

    def setup2():
        e("v_lshrrev_b32 v%d, 4, %s" % (t + 4, L))
        e("v_bfe_u32 v%d, %s, 3, 1" % (t, L))
        e("v_and_b32 v%d, 7, %s" % (t + 1, L))
        e("v_lshl_add_u32 v%d, v%d, 4, v%d" % (t + 5, t, t + 1))
        e("v_bfe_u32 v%d, %s, 1, 2" % (t + 3, L))
        e("v_lshl_add_u32 v%d, v%d, 2, v%d" % (t + 3, t, t + 3))
        e("v_xor_b32 v%d, v%d, v%d" % (t + 3, t + 3, t + 4))
        e("v_lshlrev_b32 v%d, 4, v%d" % (t + 3, t + 3))
        e("s_lshl_b32 s%d, s%d, 6" % (sT0, sWr))
        e("v_add_u32 v%d, s%d, v%d" % (t + 2, sT0, t + 5))
        e("v_lshl_add_u32 v%d, v%d, 7, v%d" % (t + 2, t + 2, t + 3))
        e("v_add_u32 v%d, 0x10000, v%d" % (vXa, t + 2))
        e("v_xor_b32 v%d, 64, v%d" % (vXa + 1, vXa))
        e("v_bfe_u32 v%d, %s, 2, 2" % (t, L))
        e("v_lshl_add_u32 v%d, v%d, 3, v%d" % (t + 6, t + 4, t))
        e("v_bfe_u32 v%d, %s, 1, 1" % (t + 2, L))
        e("v_bfe_u32 v%d, %s, 4, 1" % (t + 3, L))
        e("v_lshl_add_u32 v%d, v%d, 1, v%d" % (t + 2, t + 2, t + 3))
        e("v_lshlrev_b32 v%d, 4, v%d" % (t + 2, t + 2))
        e("v_and_b32 v%d, 1, %s" % (t + 1, L))
        e("v_lshl_add_u32 v%d, v%d, 3, v%d" % (t + 7, t + 1, t + 2))
        e("v_lshl_add_u32 v%d, v%d, 9, v%d" % (t + 1, t + 6, t + 7))
        e("s_lshl_b32 s%d, s%d, 2" % (sT0, sWc))
        for jj in range(4):
            e("s_add_u32 s%d, s%d, %d" % (sT1, sT0, jj))
            e("v_xor_b32 v%d, s%d, v%d" % (t + 2, sT1, t))
            e("v_lshl_add_u32 v%d, v%d, 6, v%d" % (vWa[1] + 2 * jj, t + 2, t + 1))
            e("v_xor_b32 v%d, 16, v%d" % (vWa[1] + 2 * jj + 1, vWa[1] + 2 * jj))
        e("v_mul_u32_u24 v%d, 384, v%d" % (t + 1, t + 6))
        e("v_add_u32 v%d, v%d, v%d" % (t + 1, t + 1, t + 7))
        e("v_bfe_u32 v%d, %s, 3, 1" % (t, L))
        e("s_mul_i32 s%d, s%d, 3" % (sT0, sWc))
        for jj in range(3):
            e("s_add_u32 s%d, s%d, %d" % (sT1, sT0, jj))
            e("v_xor_b32 v%d, s%d, v%d" % (t + 2, sT1, t))
            e("v_lshl_add_u32 v%d, v%d, 6, v%d" % (vWa[2] + 2 * jj, t + 2, t + 1))
            e("v_xor_b32 v%d, 16, v%d" % (vWa[2] + 2 * jj + 1, vWa[2] + 2 * jj))
        e("v_lshrrev_b32 v%d, 5, %s" % (t + 2, L))
        e("v_lshl_add_u32 v%d, v%d, 5, v%d" % (t + 1, t + 3, t + 5))
        e("v_lshlrev_b32 v%d, 4, v%d" % (t + 1, t + 1))
        e("v_lshl_add_u32 v%d, v%d, 10, v%d" % (vSt, t + 2, t + 1))

    def store_block(tmp, ib, jj, vtype, voff, jstep, soff, imm, pre=None):
        for j in range(2):
            if vtype:
                r0 = ACC + ((2 * ib + 0) * 8 + 2 * jj + j) * 4
                r1 = ACC + ((2 * ib + 1) * 8 + 2 * jj + j) * 4
            else:
                r0 = ACC + ((2 * ib + j) * 8 + 2 * jj + 0) * 4
                r1 = ACC + ((2 * ib + j) * 8 + 2 * jj + 1) * 4
            if pre:
                pre(r0, r1)
            tb = tmp + 4 * j
            e("v_cvt_pk_bf16_f32 v%d, v%d, v%d" % (tb, r0, r0 + 1))
            e("v_cvt_pk_bf16_f32 v%d, v%d, v%d" % (tb + 1, r0 + 2, r0 + 3))
            e("v_cvt_pk_bf16_f32 v%d, v%d, v%d" % (tb + 2, r1, r1 + 1))
            e("v_cvt_pk_bf16_f32 v%d, v%d, v%d" % (tb + 3, r1 + 2, r1 + 3))
            a.vm("buffer_store_dwordx4 %s, v%d, %s, s%d offen offset:%d %s" % (vr(tb, 4), voff, WSR, soff, imm + j * jstep, STF), 'S')

    def epilogue1(vtype, tmp):
        e("s_lshl_b32 s%d, s%d, 6" % (sT0, sH))
        e("s_lshl_b32 s%d, s%d, 3" % (sT1, sRb1))
        e("s_add_u32 s%d, s%d, s%d" % (sT0, sT0, sT1))
        e("s_lshl_b32 s%d, s%d, 1" % (sT1, sWr))
        e("s_add_u32 s%d, s%d, s%d" % (sT0, sT0, sT1))
        e("s_lshl_b32 s%d, s%d, 5" % (sT0, sT0))
        e("s_lshl_b32 s%d, s%d, 4" % (sT1, sIsV))
        e("s_add_u32 s%d, s%d, s%d" % (sT0, sT0, sT1))
        e("s_lshl_b32 s%d, s%d, 3" % (sT1, sWc))
        e("s_add_u32 s%d, s%d, s%d" % (sT0, sT0, sT1))
        e("s_lshl_b32 s%d, s%d, 10" % (sOut, sT0))
        k = 0
        for ib in range(2):
            for jj in range(4):
                if jj == 2:
                    e("s_add_u32 s%d, s%d, 4096" % (sOut, sOut))
                store_block(tmp + 8 * (k % 6), ib, jj, vtype, vSt, 128, sOut, (jj & 1) * 2048)
                k += 1
            e("s_add_u32 s%d, s%d, %d" % (sOut, sOut, 32768 - 4096))

    def padfix(val):
        def f(r0, r1):
            e("s_mov_b32 exec_lo, 0")
            e("s_mov_b32 exec_hi, 0xffff0000")
            e("v_mov_b32 v%d, %s" % (r1, val))
            for r in (1, 2, 3):
                e("v_mov_b32 v%d, 0" % (r1 + r))
            e("s_mov_b64 exec, -1")
        return f

    def qfix(r0, r1):
        for r in range(4):
            e("v_mul_f32 v%d, s%d, v%d" % (r0 + r, sCA, r0 + r))
            e("v_mul_f32 v%d, s%d, v%d" % (r1 + r, sCA, r1 + r))
        padfix("0")(r0, r1)

    def epilogue2(tmp):
        e("s_lshl_b32 s%d, s%d, 3" % (sT3, sRb2))
        e("s_lshl_b32 s%d, s%d, 1" % (sT1, sWr))
        e("s_add_u32 s%d, s%d, s%d" % (sT3, sT3, sT1))
        for jj in range(3):
            lab_a, lab_ak, lab_av, lab_n = [a.newlabel("K1_E") for _ in range(4)]
            tm = tmp + 16 * jj
            e("s_mul_i32 s%d, s%d, 3" % (sT0, sWc))
            e("s_add_u32 s%d, s%d, s%d" % (sT0, sT0, sC32))
            e("s_add_u32 s%d, s%d, %d" % (sT0, sT0, jj))
            e("s_cmp_lg_u32 s%d, 0" % sIsA)
            e("s_cbranch_scc1 %s" % lab_a)
            e("s_lshr_b32 s%d, s%d, 3" % (sT1, sT0))
            e("s_lshl_b32 s%d, s%d, 20" % (sT1, sT1))
            e("s_and_b32 s%d, s%d, 7" % (sT2, sT0))
            e("s_lshl_b32 s%d, s%d, 11" % (sT2, sT2))
            e("s_add_u32 s%d, s%d, s%d" % (sOut, sT1, sT2))
            e("s_lshl_b32 s%d, s%d, 14" % (sT1, sT3))
            e("s_add_u32 s%d, s%d, s%d" % (sOut, sOut, sT1))
            e("s_add_u32 s%d, s%d, 0x%x" % (sOut, sOut, WS_QB))
            e("s_cmp_ge_u32 s%d, 128" % sT0)
            e("s_cselect_b32 s%d, 0x7ff00000, s%d" % (sOut, sOut))
            e("s_cmp_lg_u32 s%d, 0" % sSpare)
            e("s_cselect_b32 s%d, 0x7ff00000, s%d" % (sOut, sOut))
            vq0 = list(a.vq)
            for ib in range(2):
                store_block(tm + 8 * ib, ib, jj, 0, vSt, 128, sOut, 0)
                e("s_add_u32 s%d, s%d, 16384" % (sOut, sOut))
            vq1 = list(a.vq)
            e("s_branch %s" % lab_n)
            a.label(lab_a)
            e("s_and_b32 s%d, s%d, 15" % (sT1, sT0))
            e("s_lshl_b32 s%d, s%d, 6" % (sT1, sT1))
            e("s_add_u32 s%d, s%d, s%d" % (sT1, sT1, sT3))
            e("s_lshr_b32 s%d, s%d, 4" % (sT2, sT0))
            e("s_cmp_eq_u32 s%d, 1" % sT2)
            e("s_cbranch_scc1 %s" % lab_ak)
            e("s_cmp_eq_u32 s%d, 2" % sT2)
            e("s_cbranch_scc1 %s" % lab_av)
            e("s_lshl_b32 s%d, s%d, 11" % (sOut, sT1))
            e("s_add_u32 s%d, s%d, 0x%x" % (sOut, sOut, WS_QA))
            for ib in range(2):
                store_block(tm + 8 * ib, ib, jj, 0, vSt, 128, sOut, ib * 2048, pre=qfix)
            e("s_branch %s" % lab_n)
            a.label(lab_ak)
            e("s_lshl_b32 s%d, s%d, 12" % (sOut, sT1))
            e("s_add_u32 s%d, s%d, 0x%x" % (sOut, sOut, WS_KVA))
            for ib in range(2):
                store_block(tm + 8 * ib, ib, jj, 0, vSt, 128, sOut, 0, pre=padfix("0"))
                e("s_add_u32 s%d, s%d, 4096" % (sOut, sOut))
            e("s_branch %s" % lab_n)
            a.label(lab_av)
            e("s_lshl_b32 s%d, s%d, 12" % (sOut, sT1))
            e("s_add_u32 s%d, s%d, 0x%x" % (sOut, sOut, WS_KVA + 2048))
            e("v_bfe_u32 v%d, %s, 3, 1" % (vT, L))
            e("v_and_b32 v%d, 7, %s" % (vT + 1, L))
            e("v_lshl_add_u32 v%d, v%d, 4, v%d" % (vT, vT, vT + 1))
            e("v_lshrrev_b32 v%d, 4, %s" % (vT + 1, L))
            e("v_lshlrev_b32 v%d, 4, v%d" % (vT + 1, vT + 1))
            e("v_lshl_add_u32 v%d, v%d, 6, v%d" % (vT, vT, vT + 1))
            for ib in range(2):
                store_block(tm + 8 * ib, ib, jj, 0, vT, 512, sOut, 0, pre=padfix("1.0"))
                e("s_add_u32 s%d, s%d, 4096" % (sOut, sOut))
            a.label(lab_n)
            a.vq = vq1

    def sequence(order, vtype, tag):
        a.vq = []
        NA = NHS[order[0]]
        NH = NA + NHS[order[1]]

        def G(b):
            return order[0] if b < NA else order[1]

        def tau(g, sCnt, sDst, T=None):
            if NOROT0 and g == order[0] and (g == 2 and NOROT0 > 1 or g == 1 and T is not None and T < 4):
                return ["s_mov_b32 s%d, s%d" % (sDst, sCnt), "s_add_u32 s%d, s%d, 1" % (sCnt, sCnt)]
            if g == 1:
                return ["s_add_u32 s%d, s%d, s%d" % (sDst, sCnt, sRot[1]),
                        "s_and_b32 s%d, s%d, 3" % (sDst, sDst),
                        "s_andn2_b32 s%d, s%d, 3" % (sT2, sCnt),
                        "s_or_b32 s%d, s%d, s%d" % (sDst, sDst, sT2),
                        "s_add_u32 s%d, s%d, 1" % (sCnt, sCnt)]
            return ["s_add_u32 s%d, s%d, s%d" % (sDst, sCnt, sRot[2]),
                    "s_sub_u32 s%d, s%d, 7" % (sT2, sDst),
                    "s_cmp_ge_u32 s%d, 7" % sDst,
                    "s_cselect_b32 s%d, s%d, s%d" % (sDst, sT2, sDst),
                    "s_add_u32 s%d, s%d, 1" % (sCnt, sCnt)]

        def dmaW(b):
            if b >= NH:
                return []
            g = G(b)
            f = []
            if b == 0 or b == NA:
                f.append("s_mov_b32 s%d, 0" % sWT)
            if b % 2 == 0:
                f += tau(g, sWT, sWk, b >> 1)
                f.append("s_mul_i32 s%d, s%d, s%d" % (sWk, sWk, sWstep[g]))
                f.append("s_lshl_b32 s%d, s%d, 1" % (sWk, sWk))
            f += ["s_add_u32 m0, s%d, %d" % (sWoffW, (b & 3) * 16384), "s_nop 0"]
            for q in range(2):
                ins = "buffer_load_dwordx4 v%d, %s, s%d offen offset:%d lds" % (vOW[g] + q, sr(SWs[g], 4), sWk, q * 1024)
                f.append((lambda ins=ins: a.vm(ins, ('W', b))))
            if b % 2 == 0:
                f.append("s_add_u32 s%d, s%d, s%d" % (sWk, sWk, sWstep[g]))
            return f

        def dmaX(T, half):
            if 2 * T >= NH:
                return []
            g = G(2 * T)
            f = []
            if half == 0:
                if T == 0 or 2 * T == NA:
                    f.append("s_mov_b32 s%d, 0" % sXT)
                f += tau(g, sXT, sXk, T)
                f.append("s_add_u32 m0, s%d, s%d" % (sXslot, sWoffX))
                f.append("s_lshl_b32 s%d, s%d, 7" % (sXk, sXk))
            else:
                f.append("s_add_u32 s%d, s%d, s%d" % (sT0, sXslot, sWoffX))
                f.append("s_add_u32 m0, s%d, 0x800" % sT0)
                f.append("s_add_u32 s%d, s%d, 0x8000" % (sXslot, sXslot))
            for p in range(2):
                ins = "buffer_load_dwordx4 v%d, %s, s%d offen offset:%d lds" % (vOX[g] + 2 * half + p, sr(SXs[g], 4), sXk, p * 1024)
                f.append((lambda ins=ins: a.vm(ins, ('X', T))))
            if half == 1:
                f.append("s_cmp_ge_u32 s%d, 0x28000" % sXslot)
                f.append("s_cselect_b32 s%d, 0x10000, s%d" % (sXslot, sXslot))
            return f

        def reads(b):
            g = G(b)
            st = b & 1
            RB = NCOL[g] * 2
            xr = ["ds_read_b128 %s, v%d offset:%d" % (vr(XF[st] + 4 * i, 4), vXa + (b & 1), (i >> 1) * 4096 + (i & 1) * 1024)
                  for i in range(4)]
            wr = []
            for jj in range(NCOL[g] // 64):
                for j in range(2):
                    for u in range(2):
                        wr.append("ds_read_b64_tr_b16 %s, v%d offset:%d" % (
                            vr(WF[st] + 8 * jj + 4 * j + 2 * u, 2), vWa[g] + 2 * jj + j, (b & 3) * 16384 + u * 4 * RB))
            return [xr[0]] + wr[:4] + [xr[1]] + wr[4:] + xr[2:]

        def mfmas(b):
            g = G(b)
            st = b & 1
            first = b == 0 or b == NA
            out = []
            for i in range(4):
                for c in range(NCOL[g] // 32):
                    acc = vr(ACC + (i * 8 + c) * 4, 4)
                    x = vr(XF[st] + 4 * i, 4)
                    w = vr(WF[st] + 4 * c, 4)
                    A, B = (x, w) if (vtype and g == 1) else (w, x)
                    out.append("v_mfma_f32_16x16x32_bf16 %s, %s, %s, %s" % (acc, A, B, "0" if first else acc))
            return out

        def addr_update():
            f = ["s_add_u32 s%d, s%d, 0x8000" % (sT1, sXrd),
                 "s_cmp_ge_u32 s%d, 0x18000" % sT1,
                 "s_cselect_b32 s%d, 0, s%d" % (sT1, sT1),
                 "s_sub_u32 s%d, s%d, s%d" % (sDelta, sT1, sXrd),
                 "s_mov_b32 s%d, s%d" % (sXrd, sT1)]
            for s in range(2):
                f.append("v_add_u32 v%d, s%d, v%d" % (vXa + s, sDelta, vXa + s))
            return f

        def epi(g, b_last):
            tmp = XF[b_last & 1]
            e("s_nop 7")
            if g == 1:
                epilogue1(vtype, tmp)
            else:
                epilogue2(tmp)

        def half_iter(b):
            T = b >> 1
            n = a.vm_need(lambda tg: tg == ('W', b) or tg == ('X', T))
            e("s_waitcnt vmcnt(%d) lgkmcnt(0)" % n)
            e("s_barrier")
            m = mfmas(b - 1) if b > 0 else []
            f = reads(b) + dmaW(b + 3) + dmaX(T + 2, b & 1) + (addr_update() if (b & 1) else [])
            interleave(a, m, f)
            if b == NA:
                stamp(a, 2)
                epi(order[0], b - 1)
                stamp(a, 3)
                if order[0] == 1:
                    e("s_cmp_lg_u32 s%d, 0" % sSpare)
                    e("s_cbranch_scc1 K1_GATE")
            return n

        for f in dmaX(0, 0) + dmaX(0, 1) + dmaW(0) + dmaW(1) + dmaX(1, 0) + dmaX(1, 1) + dmaW(2):
            emit1(a, f)
        setup2()
        g1_start = 0 if order[0] == 1 else NA
        lo = g1_start + 6 if g1_start else (8 if NOROT0 else 4)
        lo = (lo + 3) // 4 * 4
        hi = g1_start + 32 - 4
        nloop = (hi - lo) // 4
        b = 0
        while b < NH:
            if b == lo and nloop >= 2:
                e("s_mov_b32 s%d, %d" % (sLoop, nloop))
                lab = "K1_LOOP_%s" % tag
                a.label(lab)
                ns = [half_iter(b + k) for k in range(4)]
                e("s_sub_u32 s%d, s%d, 1" % (sLoop, sLoop))
                e("s_cmp_lg_u32 s%d, 0" % sLoop)
                e("s_cbranch_scc1 %s" % lab)
                save = a.lines
                for bb in range(b + 4, b + 4 * nloop):
                    a.lines = []
                    n = half_iter(bb)
                    assert n == ns[(bb - b) & 3], (bb, n, ns)
                a.lines = save
                b += 4 * nloop
                continue
            half_iter(b)
            if b == 0:
                stamp(a, 1)
            b += 1
        e("s_waitcnt lgkmcnt(0)")
        for m in mfmas(NH - 1):
            e(m)
        stamp(a, 4)
        epi(order[1], NH)
        e("s_branch K1_FIN")

    order = os.environ.get("K1ORDER", "stagger")
    if order == "stagger":
        e("s_bitcmp1_b32 s%d, %d" % (sJ, int(os.environ.get("STAGBIT", "0"))))
        e("s_cselect_b32 s%d, 1, 0" % sT0)
        e("s_andn2_b32 s%d, s%d, s%d" % (sT0, sT0, sSpare))
        e("s_cbranch_scc1 K1_ORD21")
    elif order == "b":
        e("s_cmp_eq_u32 s%d, 0" % sSpare)
        e("s_cbranch_scc1 K1_ORD21")
    e("s_cmp_lg_u32 s%d, 0" % sIsV)
    e("s_cbranch_scc1 K1_12V")
    sequence((1, 2), 0, "12k")
    a.label("K1_12V")
    sequence((1, 2), 1, "12v")
    a.label("K1_ORD21")
    e("s_cmp_lg_u32 s%d, 0" % sIsV)
    e("s_cbranch_scc1 K1_21V")
    sequence((2, 1), 0, "21k")
    a.label("K1_21V")
    sequence((2, 1), 1, "21v")

    a.label("K1_GATE")
    e("s_waitcnt vmcnt(0) lgkmcnt(0)")
    srd(SWs[1], 64, NB['gw'])
    e("s_sub_u32 s%d, s%d, 30" % (sT0, sJ))
    e("s_lshl_b32 s%d, s%d, 1" % (sT1, sX))
    e("s_add_u32 s%d, s%d, s%d" % (sT3, sT0, sT1))
    e("s_lshl_b32 s%d, s%d, 7" % (sT0, sT3))
    e("s_lshl_b32 s%d, s%d, 4" % (sT1, sW))
    e("s_add_u32 s%d, s%d, s%d" % (sT0, sT0, sT1))
    e("v_and_b32 v2, 15, %s" % L)
    e("v_add_u32 v2, s%d, v2" % sT0)
    e("v_lshrrev_b32 v3, 4, %s" % L)
    e("v_mul_u32_u24 v3, 224, v3")
    e("v_mul_u32_u24 v4, 896, v2")
    e("v_add_u32 v4, v4, v3")
    e("v_mov_b32 v5, 0")
    for c in range(14):
        e("buffer_load_dwordx4 %s, v4, %s, 0 offen offset:%d" % (vr(8 + 4 * c, 4), sr(SXs[2], 4), c * 16))
        e("buffer_load_dwordx4 %s, v3, %s, 0 offen offset:%d" % (vr(64 + 4 * c, 4), sr(SWs[1], 4), c * 16))
    e("s_waitcnt vmcnt(0)")
    for r in range(56):
        e("v_dot2_f32_bf16 v5, v%d, v%d, v5" % (8 + r, 64 + r))
    e("s_nop 3")
    e("v_mov_b32 v6, v5")
    e("s_nop 1")
    e("v_permlane32_swap_b32 v5, v6")
    e("s_nop 1")
    e("v_add_f32 v5, v5, v6")
    e("v_mov_b32 v6, v5")
    e("s_nop 1")
    e("v_permlane16_swap_b32 v5, v6")
    e("s_nop 1")
    e("v_add_f32 v5, v5, v6")
    e("v_cvt_pk_bf16_f32 v5, v5, v5")
    e("v_lshlrev_b32 v5, 16, v5")
    e("v_mul_f32 v5, %s, v5" % f32hex(-LOG2E))
    e("v_exp_f32 v5, v5")
    e("s_nop 0")
    e("v_add_f32 v5, 1.0, v5")
    e("v_rcp_f32 v5, v5")
    e("s_nop 0")
    e("v_cvt_pk_bf16_f32 v5, v5, v5")
    e("v_lshlrev_b32 v5, 16, v5")
    e("v_sub_f32 v6, 1.0, v5")
    e("v_cvt_pk_bf16_f32 v6, v6, v6")
    e("v_lshlrev_b32 v6, 16, v6")
    e("v_lshlrev_b32 v2, 2, v2")
    e("s_mov_b32 s%d, 0x%x" % (sT0, WS_G))
    e("s_mov_b32 s%d, 0x%x" % (sT1, WS_G + 8192))
    e("s_mov_b64 exec, 0xffff")
    e("buffer_store_dword v5, v2, %s, s%d offen" % (WSR, sT0))
    e("buffer_store_dword v6, v2, %s, s%d offen" % (WSR, sT1))
    e("s_mov_b64 exec, -1")
    e("s_lshl_b32 s%d, s%d, 13" % (sT0, sT3))
    e("s_lshl_b32 s%d, s%d, 10" % (sT1, sW))
    e("s_add_u32 s%d, s%d, s%d" % (sT0, sT0, sT1))
    e("s_add_u32 s%d, s%d, 0x%x" % (sT0, sT0, WS_FLAG))
    e("v_lshlrev_b32 v2, 4, %s" % L)
    for r in range(4):
        e("v_mov_b32 v%d, 0" % (8 + r))
    e("buffer_store_dwordx4 v[8:11], v2, %s, s%d offen" % (WSR, sT0))
    a.label("K1_FIN")
    stamp(a, 5)
    if STAMP:
        e("s_waitcnt vmcnt(0)")
    stamp(a, 6)
    stamp(a, 7)
    stamp(a, 9, real=True)
    stamp_dump(a, 10, SWS, sW, sT0)
    a.label("K1_END")
    e("s_endpgm")
    return kernel_desc(name, 256, 100, 256)
```

```python
import struct, os
from asmlib import *
from layout import *

LAUNCH = "; @launch kernel=k2_attn_kernel grid=(256,1,1) block=(512,1,1) lds=163840"
SPLIT = int(os.environ.get("SPLIT", "35"))
THR = float(os.environ.get("THR", "32"))
PART_WAVE = 33 * 1024
PFD = int(os.environ.get("PFD", "1"))
BPRIO = int(os.environ.get("BPRIO", "0"))
YF = int(os.environ.get("YF", "1"))
KROT = int(os.environ.get("KROT", "3"))
WS_Y = 128 << 20
YU = 36864
LDS_A = 0x20000


def f32hex(x):
    return "0x%08x" % struct.unpack("<I", struct.pack("<f", x))[0]


def gen_k2(a, name="k2_attn_kernel"):
    e0 = a.e
    BW = os.environ.get("BARW")

    def e(s):
        if BW and s == "s_barrier":
            e0("s_memtime s[56:57]")
            e0("s_waitcnt lgkmcnt(0)")
            e0("s_barrier")
            e0("s_memtime s[58:59]")
            e0("s_waitcnt lgkmcnt(0)")
            e0("s_sub_u32 s61, s58, s56")
            e0("s_add_u32 s60, s60, s61")
        else:
            e0(s)
    SWS = 4
    WSR = sr(SWS, 4)
    sW, sH, sI, sRole = 8, 9, 10, 11
    sQb, sKb0, sKb1, sMode = 12, 13, 14, 15
    sJw, sJ, sSeg = 16, 17, 18
    sKV = 19
    sN1, sTT = 20, 21
    sKb0a = 22
    sT = 23
    sC, sThrAdd = 24, 25
    sWoff = 26
    sT0, sT1, sT2, sT3 = 27, 28, 29, 30
    sPart, sFlag = 31, 32
    sEnd = 33
    sSpin = 34
    sInit, sPend = 35, 44
    C = LOG2E / 16.0

    a.raw(".p2align 8")
    a.label(name)
    e("s_cmp_ge_u32 s2, 256")
    e("s_cbranch_scc1 K2_END")
    stamp(a, 0)
    stamp(a, 8, real=True)
    e("s_load_dwordx2 s[36:37], s[0:1], 96")
    e("s_mov_b32 s60, 0")
    e("s_load_dwordx2 s[64:65], s[0:1], 64")
    e("s_load_dwordx2 s[66:67], s[0:1], 16")
    e("v_lshrrev_b32 v1, 6, v0")
    e("v_and_b32 v2, 63, v0")
    e("v_readfirstlane_b32 s%d, v1" % sW)
    e("s_lshr_b32 s%d, s2, 7" % sRole)
    e("s_and_b32 s%d, s2, 7" % sT0)
    e("s_lshl_b32 s%d, s%d, 1" % (sH, sT0))
    e("s_bfe_u32 s%d, s2, 0x10003" % sT0)
    e("s_add_u32 s%d, s%d, s%d" % (sH, sH, sT0))
    e("s_bfe_u32 s%d, s2, 0x30004" % sI)
    e("s_lshl_b32 s%d, s%d, 21" % (sKV, sH))
    e("s_sub_u32 s%d, 15, s%d" % (sQb, sI))
    e("s_lshl_b32 s%d, s%d, 2" % (sT0, sQb))
    e("s_add_u32 s%d, s%d, 4" % (sT0, sT0))
    e("s_cmp_eq_u32 s%d, 0" % sRole)
    e("s_cbranch_scc1 K2_PROD")
    e("s_mov_b32 s%d, 0" % sKb0)
    e("s_min_u32 s%d, s%d, %d" % (sKb1, sT0, SPLIT))
    e("s_cmp_gt_u32 s%d, %d" % (sT0, SPLIT))
    e("s_cselect_b32 s%d, 2, 0" % sMode)
    e("s_mov_b32 s%d, s%d" % (sN1, sKb1))
    e("s_mov_b32 s%d, s%d" % (sTT, sKb1))
    e("s_mov_b32 s%d, 1" % sSeg)
    e("s_branch K2_SETUP_DONE")
    a.label("K2_PROD")
    e("s_lshl_b32 s%d, s%d, 2" % (sT1, sI))
    e("s_add_u32 s%d, s%d, 4" % (sT1, sT1))
    e("s_cmp_gt_u32 s%d, %d" % (sT0, SPLIT))
    e("s_cbranch_scc1 K2_PROD2")
    e("s_mov_b32 s%d, s%d" % (sQb, sI))
    e("s_mov_b32 s%d, 0" % sKb0)
    e("s_mov_b32 s%d, s%d" % (sKb1, sT1))
    e("s_mov_b32 s%d, 0" % sMode)
    e("s_mov_b32 s%d, s%d" % (sN1, sT1))
    e("s_mov_b32 s%d, s%d" % (sTT, sT1))
    e("s_mov_b32 s%d, 1" % sSeg)
    e("s_branch K2_SETUP_DONE")
    a.label("K2_PROD2")
    e("s_mov_b32 s%d, %d" % (sKb0, SPLIT))
    e("s_mov_b32 s%d, s%d" % (sKb1, sT0))
    e("s_mov_b32 s%d, 1" % sMode)
    e("s_sub_u32 s%d, s%d, %d" % (sN1, sT0, SPLIT))
    e("s_add_u32 s%d, s%d, s%d" % (sTT, sN1, sT1))
    e("s_mov_b32 s%d, 0" % sSeg)
    a.label("K2_SETUP_DONE")
    e("s_mov_b32 s%d, s%d" % (sKb0a, sKb0))
    e("s_waitcnt lgkmcnt(0)")
    e("s_mov_b32 s%d, s36" % SWS)
    e("s_mov_b32 s%d, s37" % (SWS + 1))
    e("s_mov_b32 s%d, 0x%x" % (SWS + 2, WS_BYTES))
    e("s_mov_b32 s%d, 0x20000" % (SWS + 3))
    e("s_cmp_ge_u32 s%d, 4" % sW)
    e("s_cbranch_scc1 K2_AWAVE")

    O = 0
    Q = 128
    S = [192, 208]
    FR = 224
    NFR = 6
    vL16, vV, vMc, vL, vThr, vTm, vT1, vT2 = 248, 249, 250, 251, 252, 253, 254, 255
    BSEQ = list(range(6)) * 2 + list(range(5)) * 4
    assert len(BSEQ) == 32
    prev_user = {}
    for m in range(32):
        k = 1
        while BSEQ[(m - k) % 32] != BSEQ[m]:
            k += 1
        prev_user[m] = max(m - k, m - 6)
    if BPRIO:
        e("s_setprio %d" % BPRIO)
    e("v_lshlrev_b32 v%d, 4, v2" % vL16)
    e("v_add_u32 v%d, 0x10000, v%d" % (vV, vL16))
    e("s_mov_b32 s%d, %s" % (sC, f32hex(C)))
    e("s_mov_b32 s%d, %s" % (sThrAdd, f32hex(THR)))
    e("s_mov_b32 s%d, -1" % sPend)
    e("s_lshl_b32 s%d, s%d, 3" % (sT0, sH))
    e("s_add_u32 s%d, s%d, s%d" % (sT0, sT0, sI))
    e("s_lshl_b32 s%d, s%d, 2" % (sT0, sT0))
    e("s_add_u32 s%d, s%d, s%d" % (sT0, sT0, sW))
    e("s_mul_i32 s%d, s%d, %d" % (sPart, sT0, PART_WAVE))
    e("s_add_u32 s%d, s%d, 0x%x" % (sPart, sPart, WS_PART))
    e("s_lshl_b32 s%d, s%d, 7" % (sFlag, sT0))
    e("s_add_u32 s%d, s%d, 0x%x" % (sFlag, sFlag, WS_FLAG))
    e("s_mov_b32 s%d, 0" % sT)
    e("s_mov_b32 s%d, 1" % sSpin)

    def load_q():
        e("s_lshl_b32 s%d, s%d, 6" % (sT0, sH))
        e("s_lshl_b32 s%d, s%d, 2" % (sT1, sQb))
        e("s_add_u32 s%d, s%d, s%d" % (sJw, sT1, sW))
        e("s_add_u32 s%d, s%d, s%d" % (sT0, sT0, sJw))
        e("s_lshl_b32 s%d, s%d, 14" % (sT0, sT0))
        e("s_add_u32 s%d, s%d, 0x%x" % (sT0, sT0, WS_QB))
        for s in range(16):
            if s and s % 4 == 0:
                e("s_add_u32 s%d, s%d, 4096" % (sT0, sT0))
            e("buffer_load_dwordx4 %s, v%d, %s, s%d offen offset:%d" % (vr(Q + 4 * s, 4), vL16, WSR, sT0, (s % 4) * 1024))

    load_q()
    a.label("K2_SEG")
    for r in range(128):
        e("v_mov_b32 v%d, 0" % (O + r))
    e("v_mov_b32 v%d, 0" % vL)
    e("v_mov_b32 v%d, %s" % (vMc, f32hex(-1e30 * C)))
    e("s_sub_u32 s%d, s%d, 1" % (sT0, sKb1))
    e("s_min_u32 s%d, s%d, s%d" % (sEnd, sT0, sJw))
    e("s_mov_b32 s%d, s%d" % (sJ, sKb0))
    e("s_cmp_eq_u32 s%d, 0" % sSpin)
    e("s_cbranch_scc1 K2_NOBAR")
    e("s_barrier")
    e("s_mov_b32 s%d, 0" % sSpin)
    e("s_waitcnt vmcnt(0)")
    a.label("K2_NOBAR")
    e("s_waitcnt vmcnt(33) lgkmcnt(0)")
    stamp(a, 1)
    stamp(a, 5, real=True)
    if STAMP:
        e("s_waitcnt lgkmcnt(0)")

    def fr(m):
        return vr(FR + 4 * BSEQ[m % 32], 4)

    def qk_mfma(s, sb, f):
        return "v_mfma_f32_32x32x16_bf16 %s, %s, %s, %s" % (
            vr(S[sb], 16), f, vr(Q + 4 * s, 4), "0" if s == 0 else vr(S[sb], 16))

    def pv_mfma(n, sb, f):
        db, t = n >> 1, n & 1
        return "v_mfma_f32_32x32x16_bf16 %s, %s, %s, %s" % (
            vr(O + 16 * db, 16), f, vr(S[sb] + 4 * t, 4), vr(O + 16 * db, 16))

    def rdK(f, slot, chunk):
        return "ds_read_b128 %s, v%d offset:%d" % (f, vL16, slot * 16384 + chunk * 1024)

    def rdV(f, slot, chunk):
        return "ds_read_b128 %s, v%d offset:%d" % (f, vV, slot * 16384 + chunk * 1024)

    def softmax_ops(sb):
        b = S[sb]
        ops = []
        for i in range(16 + 2):
            if i < 16:
                ops.append("v_exp_f32 v%d, v%d" % (b + i, b + i))
            k = i - 2
            if 0 <= k < 16:
                ops.append("v_add_f32 v%d, v%d, v%d" % (vL, vL, b + k))
                if k & 1:
                    ops.append("v_cvt_pk_bf16_f32 v%d, v%d, v%d" % (b + (k >> 1), b + k - 1, b + k))
        return ops

    def fma_ops(sb):
        b = S[sb]
        return ["v_fma_f32 v%d, v%d, s%d, -v%d" % (b + i, b + i, sC, vMc) for i in range(16)]

    def max_ops(sb):
        b = S[sb]
        ops = ["v_max3_f32 v%d, v%d, v%d, v%d" % (vTm, b, b + 1, b + 2)]
        for k in range(3, 15, 2):
            ops.append("v_max3_f32 v%d, v%d, v%d, v%d" % (vTm, vTm, b + k, b + k + 1))
        ops.append("v_max_f32 v%d, v%d, v%d" % (vTm, vTm, b + 15))
        ops.append("v_cmp_lt_f32 vcc, s%d, v%d" % (sThrAdd, vTm))
        return ops

    def fmamax_ops(sb):
        f = fma_ops(sb)
        m = max_ops(sb)
        ops = f[0:4] + [m[0]]
        for k in range(6):
            ops += f[4 + 2 * k:6 + 2 * k] + [m[1 + k]]
        ops += m[7:]
        return ops

    def slow_path(sb, lab):
        pass

    def emit_slow(sb, lab, back):
        a.label(lab)
        b = S[sb]
        nomask = a.newlabel("K2_NOMASK")
        ret = a.newlabel("K2_SLOWRET")
        resc = a.newlabel("K2_RESC")
        e("s_cmp_lg_u32 s%d, s%d" % (sJ, sJw))
        e("s_cbranch_scc1 %s" % nomask)
        e("v_bfe_u32 v%d, v%d, 4, 5" % (vT2, vL16))
        e("v_lshrrev_b32 v%d, 9, v%d" % (vT1, vL16))
        e("v_lshlrev_b32 v%d, 2, v%d" % (vT1, vT1))
        e("v_sub_u32 v%d, v%d, v%d" % (vT2, vT2, vT1))
        e("v_mov_b32 v%d, %s" % (vT1, f32hex(-1e30)))
        for i in range(0, 16, 2):
            for j in (0, 1):
                kk = 8 * ((i + j) >> 2) + ((i + j) & 3)
                e("v_cmp_gt_i32 s[%d:%d], %d, v%d" % (40 + 2 * j, 41 + 2 * j, kk, vT2))
            e("s_nop 0")
            for j in (0, 1):
                e("v_cndmask_b32 v%d, v%d, v%d, s[%d:%d]" % (b + i + j, b + i + j, vT1, 40 + 2 * j, 41 + 2 * j))
        a.label(nomask)
        for op in max_ops(sb):
            e(op)
        e("s_cmp_lg_u32 s%d, 0" % sInit)
        e("s_cbranch_scc1 %s" % resc)
        e("s_cbranch_vccz %s" % ret)
        a.label(resc)
        e("v_mov_b32 v%d, v%d" % (vT1, vTm))
        e("s_nop 1")
        e("v_permlane32_swap_b32 v%d, v%d" % (vTm, vT1))
        e("s_nop 1")
        e("v_max_f32 v%d, v%d, v%d" % (vTm, vTm, vT1))
        noclamp = a.newlabel("K2_NOCLAMP")
        e("s_cbranch_scc1 %s" % noclamp)
        e("v_max_f32 v%d, 0, v%d" % (vTm, vTm))
        e("v_sub_f32 v%d, 0, v%d" % (vT2, vTm))
        e("v_exp_f32 v%d, v%d" % (vT2, vT2))
        e("s_nop 7")
        e("v_mul_f32 v%d, v%d, v%d" % (vL, vL, vT2))
        for r in range(128):
            e("v_mul_f32 v%d, v%d, v%d" % (O + r, O + r, vT2))
        a.label(noclamp)
        e("v_add_f32 v%d, v%d, v%d" % (vMc, vMc, vTm))
        for i in range(16):
            e("v_sub_f32 v%d, v%d, v%d" % (b + i, b + i, vTm))
        e("s_mov_b32 s%d, 0" % sInit)
        a.label(ret)
        e("s_nop 1")
        e("s_setpc_b64 s[38:39]")

    def call_slow(sb, back):
        pass

    e("s_and_b32 s%d, s%d, 3" % (sT0, sT))
    for ph in range(1, 4):
        e("s_cmp_eq_u32 s%d, %d" % (sT0, ph))
        e("s_cbranch_scc1 K2_PRE%d" % ph)
    head_reads = [m for m in range(32) if prev_user[m] < 0]
    for ph in range(4):
        a.label("K2_PRE%d" % ph)
        cur = ph & 1
        e("s_cmp_lt_i32 s%d, s%d" % (sEnd, sKb0))
        e("s_cbranch_scc1 K2_STEP%d" % ph)
        for s in range(5):
            e(rdK(vr(FR + 4 * s, 4), ph, s))
        for s in range(16):
            e("s_waitcnt lgkmcnt(%d)" % min(4, 15 - s))
            e(qk_mfma(s, cur, vr(FR + 4 * (s % 6), 4)))
            if s + 5 < 16:
                e(rdK(vr(FR + 4 * ((s + 5) % 6), 4), ph, s + 5))
        for m in head_reads:
            e(rdK(fr(m), (ph + 1) & 3, m))
        e("v_mov_b32 v%d, 0" % vMc)
        e("s_mov_b32 s%d, 1" % sInit)
        e("s_nop 7")
        for f in fma_ops(cur):
            e(f)
        e("s_call_b64 s[38:39], K2_SLOW%d" % cur)
        e("s_branch K2_STEP%d" % ph)

    for ph in range(4):
        cur, nxt = ph & 1, 1 - (ph & 1)
        kslot, vslot, k2slot = (ph + 1) & 3, ph, (ph + 2) & 3
        a.label("K2_STEP%d" % ph)
        e("s_cmp_ge_u32 s%d, s%d" % (sJ, sKb1))
        e("s_cbranch_scc1 K2_SEG_END")
        e("s_cmp_eq_u32 s%d, s%d" % (sJ, sPend))
        e("s_cbranch_scc1 K2_FLAG%d" % ph)
        a.label("K2_FLAGBACK%d" % ph)
        e("s_barrier")
        e("s_cmp_ge_i32 s%d, s%d" % (sJ, sEnd))
        e("s_cbranch_scc1 K2_LAST%d" % ph)
        def rdn(m):
            if m < 16:
                return rdK(fr(m), kslot, m)
            if m < 32:
                return rdV(fr(m), vslot, m - 16)
            return rdK(fr(m), k2slot, m - 32)
        after = {n: [] for n in range(32)}
        for m in range(32):
            pu = prev_user[m]
            if pu >= 0:
                after[pu].append(m)
            else:
                after[pu + 32].append(m + 32)
        fx = softmax_ops(cur)
        fy = fmamax_ops(nxt)

        def share(lst, g, ng):
            return lst[(g * len(lst)) // ng:((g + 1) * len(lst)) // ng]
        issued = list(head_reads)
        for n in range(32):
            if n % 2 == 0:
                last = max(issued.index(n), issued.index(n + 1))
                e("s_waitcnt lgkmcnt(%d)" % (len(issued) - 1 - last))
            e(qk_mfma(n, nxt, fr(n)) if n < 16 else pv_mfma(n - 16, cur, fr(n)))
            for m in after[n]:
                e(rdn(m))
                issued.append(m)
            if n < 15:
                for f in share(fx, n, 15):
                    e(f)
            if 20 <= n < 31:
                for f in share(fy, n - 20, 11):
                    e(f)
            if n == 29:
                e("s_add_u32 s%d, s%d, 1" % (sJ, sJ))
                e("s_add_u32 s%d, s%d, 1" % (sT, sT))
            if n == 30:
                e("s_cmp_eq_u32 s%d, s%d" % (sJ, sJw))
        e("s_cbranch_vccnz K2_TOSLOW%d" % ph)
        e("s_cbranch_scc1 K2_TOSLOW%d" % ph)
        if ph == 3:
            e("s_branch K2_STEP0")
    for ph in range(4):
        cur, nxt = ph & 1, 1 - (ph & 1)
        a.label("K2_TOSLOW%d" % ph)
        e("s_call_b64 s[38:39], K2_SLOW%d" % nxt)
        e("s_branch K2_STEP%d" % ((ph + 1) & 3))
        a.label("K2_LAST%d" % ph)
        e("s_cmp_gt_i32 s%d, s%d" % (sJ, sEnd))
        e("s_cbranch_scc1 K2_IDLE%d" % ph)
        e("v_bfe_u32 v%d, v%d, 4, 5" % (vT1, vL16))
        e("v_lshlrev_b32 v%d, 2, v%d" % (vT1, vT1))
        e("s_lshl_b32 s%d, s%d, 7" % (sT0, sJw))
        e("s_add_u32 s%d, s%d, 0x%x" % (sT0, sT0, WS_G + 8192))
        e("buffer_load_dword v%d, v%d, %s, s%d offen" % (vThr, vT1, WSR, sT0))
        e("v_mov_b32 v%d, 0" % vT2)
        e("buffer_load_dword v%d, v%d, %s, s%d offen sc1" % (vTm, vT2, WSR, sFlag))
        e("s_waitcnt lgkmcnt(0)")
        for n in range(5):
            e(rdV(vr(FR + 4 * n, 4), ph, n))
        for f in softmax_ops(cur):
            e(f)
        e("s_nop 1")
        for n in range(16):
            e("s_waitcnt lgkmcnt(%d)" % min(4, 15 - n))
            e(pv_mfma(n, cur, vr(FR + 4 * (n % 6), 4)))
            if n + 5 < 16:
                e(rdV(vr(FR + 4 * ((n + 5) % 6), 4), ph, n + 5))
        a.label("K2_IDLE%d" % ph)
        e("s_add_u32 s%d, s%d, 1" % (sJ, sJ))
        e("s_add_u32 s%d, s%d, 1" % (sT, sT))
        e("s_branch K2_STEP%d" % ((ph + 1) & 3))
    for sb in range(2):
        emit_slow(sb, "K2_SLOW%d" % sb, None)
    for ph in range(4):
        a.label("K2_FLAG%d" % ph)
        e("s_waitcnt vmcnt(0)")
        e("v_mov_b32 v%d, 1" % vT1)
        e("v_mov_b32 v%d, 0" % vT2)
        e("s_mov_b64 exec, 1")
        e("buffer_store_dword v%d, v%d, %s, s%d offen sc1" % (vT1, vT2, WSR, sFlag))
        e("s_mov_b64 exec, -1")
        e("s_mov_b32 s%d, -1" % sPend)
        e("s_branch K2_FLAGBACK%d" % ph)

    a.label("K2_SEG_END")
    stamp(a, 2)
    stamp(a, 6, real=True)
    e("s_nop 7")
    e("s_nop 7")
    e("v_mov_b32 v%d, v%d" % (vT1, vL))
    e("s_nop 1")
    e("v_permlane32_swap_b32 v%d, v%d" % (vL, vT1))
    e("s_nop 1")
    e("v_add_f32 v%d, v%d, v%d" % (vL, vL, vT1))
    e("s_cmp_eq_u32 s%d, 1" % sMode)
    e("s_cbranch_scc1 K2_PUBLISH")
    if YF:
        e("s_waitcnt lgkmcnt(0)")
        e("s_barrier")
    e("s_mul_i32 s%d, s%d, 288" % (sT3, sJw))
    e("s_lshl_b32 s%d, s%d, 4" % (sT1, sH))
    e("s_add_u32 s%d, s%d, s%d" % (sT3, sT3, sT1))
    e("s_lshl_b32 s%d, s%d, 10" % (sT3, sT3))
    e("s_add_u32 s%d, s%d, 0x%x" % (sT3, sT3, WS_CTX))
    e("s_cmp_eq_u32 s%d, 2" % sMode)
    e("s_cbranch_scc1 K2_COMBINE")
    e("v_rcp_f32 v%d, v%d" % (vT2, vL))
    e("s_waitcnt vmcnt(0)")
    e("v_mul_f32 v%d, v%d, v%d" % (vT2, vT2, vThr))

    def store_ctx(db):
        if YF:
            for r in range(8):
                e("v_cvt_pk_bf16_f32 v%d, v%d, v%d" % (O + 16 * db + r, O + 16 * db + 2 * r, O + 16 * db + 2 * r + 1))
            return
        tb = S[0] + 8 * (db & 3)
        for r in range(8):
            e("v_cvt_pk_bf16_f32 v%d, v%d, v%d" % (tb + r, O + 16 * db + 2 * r, O + 16 * db + 2 * r + 1))
        for t in range(2):
            e("buffer_store_dwordx4 %s, v%d, %s, s%d offen offset:%d %s" % (
                vr(tb + 4 * t, 4), vL16, WSR, sT3, ((db & 1) * 2 + t) * 1024, os.environ.get("K2ST", "sc1")))
        if db & 1:
            e("s_add_u32 s%d, s%d, 4096" % (sT3, sT3))

    for db in range(8):
        for r in range(16):
            e("v_mul_f32 v%d, v%d, v%d" % (O + 16 * db + r, O + 16 * db + r, vT2))
        store_ctx(db)
    a.label("K2_NEXT")
    stamp(a, 3)
    if YF:
        vW0, vW1, vB0 = vMc, vL, vThr
        sU, sNu, sY = sKb0, sKb1, sT3
        e("v_lshrrev_b32 v%d, 4, v%d" % (vT1, vL16))
        e("v_lshrrev_b32 v%d, 5, v%d" % (vT2, vT1))
        e("v_bfe_u32 v%d, v%d, 2, 2" % (vTm, vT1))
        e("v_lshl_add_u32 v%d, v%d, 2, v%d" % (vT2, vT2, vTm))
        e("v_lshlrev_b32 v%d, 7, v%d" % (vT2, vT2))
        e("v_bfe_u32 v%d, v%d, 4, 1" % (vTm, vT1))
        e("v_lshl_add_u32 v%d, v%d, 5, v%d" % (vT2, vTm, vT2))
        e("v_and_b32 v%d, 3, v%d" % (vTm, vT1))
        e("v_lshl_add_u32 v%d, v%d, 3, v%d" % (vT2, vTm, vT2))
        e("v_bfe_u32 v%d, v%d, 3, 1" % (vTm, vT1))
        e("v_lshl_add_u32 v%d, v%d, 6, v%d" % (vB0, vTm, vT2))
        e("s_mov_b32 s%d, 0" % sU)
        e("s_sub_u32 s%d, s%d, 7" % (sT0, sI))
        e("s_cmp_ge_u32 s%d, 7" % sI)
        e("s_cselect_b32 s%d, s%d, s%d" % (sNu, sT0, sI))
        e("s_lshl_b32 s%d, s%d, 11" % (sT0, sW))
        e("s_add_u32 s%d, s%d, %d" % (sT0, sT0, 4 * YU))
        e("v_add_u32 v%d, s%d, v%d" % (vT1, sT0, vL16))
        a.label("K2_YLOOP")
        e("s_barrier")
        e("s_cmp_lg_u32 s%d, 0" % sU)
        e("s_cbranch_scc1 K2_YNOA")
        e("ds_read_b128 %s, v%d" % (vr(O + 8, 4), vT1))
        e("ds_read_b128 %s, v%d offset:1024" % (vr(O + 12, 4), vT1))
        a.label("K2_YNOA")
        e("s_and_b32 s%d, s%d, 3" % (sT0, sU))
        e("s_mul_i32 s%d, s%d, %d" % (sT0, sT0, YU))
        e("v_add_u32 v%d, s%d, v%d" % (vW0, sT0, vB0))
        e("v_xor_b32 v%d, 64, v%d" % (vW1, vW0))
        e("s_mul_i32 s%d, s%d, 14" % (sY, sJw))
        e("s_lshl_b32 s%d, s%d, 1" % (sT0, sNu))
        e("s_add_u32 s%d, s%d, s%d" % (sY, sY, sT0))
        e("s_lshl_b32 s%d, s%d, 4" % (sY, sY))
        e("s_add_u32 s%d, s%d, s%d" % (sY, sY, sH))
        e("s_lshl_b32 s%d, s%d, 11" % (sY, sY))
        e("s_add_u32 s%d, s%d, 0x%x" % (sY, sY, WS_Y))
        NWF, DIST = 16, 6

        def wrd(m):
            nb, ks = m // 18, m % 18
            return ["ds_read_b64_tr_b16 %s, v%d offset:%d" % (vr(Q + 4 * (m % NWF) + 2 * u, 2), vW1 if nb else vW0, ks * 2048 + u * 1024)
                    for u in range(2)]

        def bfrag(ks):
            return vr(O + 16 * (ks >> 1) + 4 * (ks & 1), 4) if ks < 16 else vr(O + 8 + 4 * (ks - 16), 4)

        def ystore(nb):
            ops = []
            for r in range(8):
                ops.append("v_cvt_pk_bf16_f32 v%d, v%d, v%d" % (FR + 8 * nb + r, S[nb] + 2 * r, S[nb] + 2 * r + 1))
            for t in range(2):
                ops.append("buffer_store_dwordx4 %s, v%d, %s, s%d offen offset:%d sc1" % (vr(FR + 8 * nb + 4 * t, 4), vL16, WSR, sY, t * 1024))
            return ops
        for m in range(DIST):
            for f in wrd(m):
                e(f)
        st0 = ystore(0)
        for m in range(36):
            nb, ks = m // 18, m % 18
            e("s_waitcnt lgkmcnt(%d)" % (2 * min(DIST - 1, 35 - m)))
            e("v_mfma_f32_32x32x16_bf16 %s, %s, %s, %s" % (vr(S[nb], 16), vr(Q + 4 * (m % NWF), 4), bfrag(ks), "0" if ks == 0 else vr(S[nb], 16)))
            if m + DIST < 36:
                for f in wrd(m + DIST):
                    e(f)
            if 23 <= m < 33:
                e(st0[m - 23])
        e("s_add_u32 s%d, s%d, 32768" % (sY, sY))
        e("s_add_u32 s%d, s%d, 1" % (sU, sU))
        e("s_add_u32 s%d, s%d, 1" % (sNu, sNu))
        e("s_cmp_ge_u32 s%d, 7" % sNu)
        e("s_cselect_b32 s%d, 0, s%d" % (sNu, sNu))
        e("s_nop 7")
        for f in ystore(1):
            e(f)
        e("s_cmp_lt_u32 s%d, 7" % sU)
        e("s_cbranch_scc1 K2_YLOOP")
    e("s_branch K2_DONE")

    a.label("K2_PUBLISH")
    e("s_mov_b32 s%d, s%d" % (sQb, sI))
    e("s_mov_b32 s%d, 0" % sKb0)
    e("s_lshl_b32 s%d, s%d, 2" % (sKb1, sI))
    e("s_add_u32 s%d, s%d, 4" % (sKb1, sKb1))
    e("s_mov_b32 s%d, 0" % sMode)
    load_q()
    e("s_mov_b32 s%d, s%d" % (sT0, sPart))
    for c in range(32):
        if c and c % 4 == 0:
            e("s_add_u32 s%d, s%d, 4096" % (sT0, sT0))
        e("buffer_store_dwordx4 %s, v%d, %s, s%d offen offset:%d sc1" % (vr(O + 4 * c, 4), vL16, WSR, sT0, (c % 4) * 1024))
    e("s_add_u32 s%d, s%d, 4096" % (sT0, sT0))
    e("v_mov_b32 v%d, v%d" % (S[0], vMc))
    e("v_mov_b32 v%d, v%d" % (S[0] + 1, vL))
    e("v_mov_b32 v%d, 0" % (S[0] + 2))
    e("v_mov_b32 v%d, 0" % (S[0] + 3))
    e("buffer_store_dwordx4 %s, v%d, %s, s%d offen sc1" % (vr(S[0], 4), vL16, WSR, sT0))
    e("s_mov_b32 s%d, 2" % sPend)
    e("s_nop 1")
    e("s_branch K2_SEG")

    a.label("K2_COMBINE")
    e("v_mov_b32 v%d, 0" % vT2)
    e("s_mov_b32 s%d, 0x40000" % sSpin)
    e("s_waitcnt vmcnt(0)")
    e("v_readfirstlane_b32 s%d, v%d" % (sT0, vTm))
    e("s_cmp_eq_u32 s%d, 1" % sT0)
    e("s_cbranch_scc1 K2_POLL_OK")
    a.label("K2_POLL")
    e("buffer_load_dword v%d, v%d, %s, s%d offen sc1" % (vT1, vT2, WSR, sFlag))
    e("s_waitcnt vmcnt(0)")
    e("v_readfirstlane_b32 s%d, v%d" % (sT0, vT1))
    e("s_cmp_eq_u32 s%d, 1" % sT0)
    e("s_cbranch_scc1 K2_POLL_OK")
    e("s_sleep 2")
    e("s_sub_u32 s%d, s%d, 1" % (sSpin, sSpin))
    e("s_cmp_lg_u32 s%d, 0" % sSpin)
    e("s_cbranch_scc1 K2_POLL")
    a.label("K2_POLL_OK")
    e("s_waitcnt lgkmcnt(0)")
    e("s_add_u32 s%d, s%d, 32768" % (sT0, sPart))
    e("buffer_load_dwordx4 %s, v%d, %s, s%d offen sc1" % (vr(FR, 4), vL16, WSR, sT0))
    e("s_mov_b32 s%d, s%d" % (sT0, sPart))

    def load_half(hf):
        for c in range(16):
            if c and c % 4 == 0:
                e("s_add_u32 s%d, s%d, 4096" % (sT0, sT0))
            e("buffer_load_dwordx4 %s, v%d, %s, s%d offen offset:%d sc1" % (vr(Q + 4 * c, 4), vL16, WSR, sT0, (c % 4) * 1024))
        e("s_add_u32 s%d, s%d, 4096" % (sT0, sT0))
    load_half(0)
    e("s_waitcnt vmcnt(16)")
    e("v_max_f32 v%d, v%d, v%d" % (vTm, vMc, FR))
    e("v_sub_f32 v%d, v%d, v%d" % (vT1, vMc, vTm))
    e("v_sub_f32 v%d, v%d, v%d" % (vT2, FR, vTm))
    e("v_exp_f32 v%d, v%d" % (vT1, vT1))
    e("v_exp_f32 v%d, v%d" % (vT2, vT2))
    e("s_nop 0")
    e("v_mul_f32 v%d, v%d, v%d" % (vL, vL, vT1))
    e("v_fma_f32 v%d, v%d, v%d, v%d" % (vL, FR + 1, vT2, vL))
    e("v_rcp_f32 v%d, v%d" % (vL, vL))
    e("s_nop 0")
    e("v_mul_f32 v%d, v%d, v%d" % (vL, vL, vThr))
    e("v_mul_f32 v%d, v%d, v%d" % (vT1, vT1, vL))
    e("v_mul_f32 v%d, v%d, v%d" % (vT2, vT2, vL))
    for hf in range(2):
        e("s_waitcnt vmcnt(0)")
        for r in range(64):
            e("v_mul_f32 v%d, v%d, v%d" % (O + 64 * hf + r, O + 64 * hf + r, vT1))
            e("v_fma_f32 v%d, v%d, v%d, v%d" % (O + 64 * hf + r, Q + r, vT2, O + 64 * hf + r))
        if hf == 0:
            load_half(1)
        for db in range(4 * hf, 4 * hf + 4):
            store_ctx(db)
    e("s_branch K2_NEXT")

    a.label("K2_DONE")
    if STAMP:
        e("s_waitcnt vmcnt(0)")
    stamp(a, 4); stamp(a, 7)
    if BW:
        e("s_waitcnt lgkmcnt(0)")
        e("s_add_u32 s78, s72, s60")
        e("s_addc_u32 s79, s73, 0")
    stamp(a, 9, real=True)
    stamp_dump(a, 10, SWS, sW, sT0, kidx=1, wave=int(os.environ.get("K2WAVE", "3")))
    e("s_endpgm")

    a.label("K2_AWAVE")
    if int(os.environ.get("APRIO", "1")):
        e("s_setprio %d" % int(os.environ.get("APRIO", "1")))
    AO, NM, AQ = 0, 16, 32
    AS = [40, 56]
    KF = [72, 80]
    VF = 88
    aL16, aDma, aK, aV, aTm, aT1, aT2, aG, aPF, aPFs, aPFm, aPFb, aPFd, aDm2 = range(96, 110)
    sWa, sQ32, sA, sKVA, sThr, sKsrc, sVsrc, sAsrc, sWoffA = 40, 41, 42, 43, 44, 45, 46, 47, 48
    sKt, sVt = 49, 50
    e("s_sub_u32 s%d, s%d, 4" % (sWa, sW))
    e("s_mov_b32 s68, s66")
    e("s_mov_b32 s69, s67")
    e("s_mov_b32 s70, 0x%x" % NB['wo'])
    e("s_mov_b32 s71, 0x20000")
    e("s_mov_b32 s66, 0x%x" % NB['wob'])
    e("s_mov_b32 s67, 0x20000")
    e("v_lshlrev_b32 v%d, 4, v2" % aL16)
    e("s_lshl_b32 s%d, s%d, 12" % (sWoff, sWa))
    e("s_lshl_b32 s%d, s%d, 11" % (sWoffA, sWa))
    e("v_add_u32 v%d, s%d, v%d" % (aDma, sWoff, aL16))
    e("v_add_u32 v%d, s%d, v%d" % (aDm2, sWoffA, aL16))
    e("v_add_u32 v%d, 0x%x, v%d" % (aK, LDS_A, aL16))
    e("v_lshrrev_b32 v3, 5, v2")
    e("v_bfe_u32 v4, v2, 2, 2")
    e("v_lshl_add_u32 v3, v3, 2, v4")
    e("v_lshlrev_b32 v3, 6, v3")
    e("v_bfe_u32 v4, v2, 4, 1")
    e("v_and_b32 v5, 1, v2")
    e("v_lshl_add_u32 v4, v4, 1, v5")
    e("v_bfe_u32 v5, v2, 1, 1")
    e("v_lshl_add_u32 v4, v4, 1, v5")
    e("v_lshl_add_u32 v3, v4, 3, v3")
    e("v_add_u32 v%d, 0x%x, v3" % (aV, LDS_A + 2048))
    e("s_sub_u32 s%d, 15, s%d" % (sT0, sI))
    e("s_cmp_eq_u32 s%d, 0" % sRole)
    e("s_cselect_b32 s%d, s%d, s%d" % (sT0, sI, sT0))
    e("s_lshl_b32 s%d, s%d, 2" % (sQ32, sT0))
    e("s_add_u32 s%d, s%d, s%d" % (sQ32, sQ32, sWa))
    e("s_lshl_b32 s%d, s%d, 18" % (sKVA, sH))
    e("s_add_u32 s%d, s%d, 0x%x" % (sKVA, sKVA, WS_KVA))
    e("s_mov_b32 s%d, %s" % (sThr, f32hex(THR)))
    e("v_and_b32 v3, 7, v2")
    e("s_lshl_b32 s%d, s%d, 5" % (sT1, sI))
    e("s_lshl_b32 s%d, s%d, 3" % (sT2, sWa))
    e("s_add_u32 s%d, s%d, s%d" % (sT1, sT1, sT2))
    e("v_add_u32 v3, s%d, v3" % sT1)
    e("v_lshlrev_b32 v3, 7, v3")
    e("s_mul_i32 s%d, s%d, %d" % (sT1, sRole, SPLIT))
    e("s_sub_u32 s%d, %d, s%d" % (sT1, SPLIT, sT1))
    e("s_lshl_b32 s%d, s%d, 15" % (sT1, sT1))
    e("v_add_u32 v3, s%d, v3" % sT1)
    e("s_lshl_b32 s%d, s%d, 2" % (sT1, sT0))
    e("s_add_u32 s%d, s%d, s%d" % (sT1, sT1, sWa))
    e("s_lshl_b32 s%d, s%d, 7" % (sT1, sT1))
    e("v_mov_b32 v4, s%d" % sT1)
    e("v_and_b32 v5, 8, v2")
    e("v_cmp_ne_u32 vcc, 0, v5")
    e("s_nop 1")
    e("v_cndmask_b32 v%d, v3, v4, vcc" % aPF)
    e("v_mov_b32 v3, 0x8000"); e("v_mov_b32 v4, 0x2000")
    e("v_cndmask_b32 v%d, v3, v4, vcc" % aPFs)
    e("v_mov_b32 v3, 0x1fffff"); e("v_mov_b32 v4, 0x3ffff")
    e("v_cndmask_b32 v%d, v3, v4, vcc" % aPFm)
    e("v_mov_b32 v3, s%d" % sKV); e("v_mov_b32 v4, s%d" % sKVA)
    e("v_cndmask_b32 v%d, v3, v4, vcc" % aPFb)

    def pf():
        return ["v_add_u32 v%d, v%d, v%d" % (aT2, aPFb, aPF),
                "v_add_u32 v%d, v%d, v%d" % (aPF, aPF, aPFs),
                "buffer_load_dword v%d, v%d, %s, 0 offen" % (aPFd, aT2, WSR),
                "v_and_b32 v%d, v%d, v%d" % (aPF, aPF, aPFm)]


    def dmaB(isV, slot):
        sSrc, sIdx = (sVsrc, sVt) if isV else (sKsrc, sKt)
        base = 0x10000 if isV else 0
        f = []
        if slot is None:
            f.append("s_and_b32 s%d, s%d, 3" % (sT0, sIdx))
            f.append("s_lshl_b32 s%d, s%d, 14" % (sT0, sT0))
            f.append("s_add_u32 s%d, s%d, s%d" % (sT0, sT0, sWoff))
            f.append("s_add_u32 m0, s%d, 0x%x" % (sT0, base))
        else:
            f.append("s_add_u32 m0, s%d, 0x%x" % (sWoff, base + slot * 16384))
        f.append("s_cmp_lt_u32 s%d, s%d" % (sIdx, sTT))
        f.append("s_cselect_b32 s%d, s%d, 0x7ff00000" % (sT1, sSrc))
        for p in range(4):
            f.append("buffer_load_dwordx4 v%d, %s, s%d offen offset:%d lds" % (aDma, WSR, sT1, p * 1024))
        f.append("s_add_u32 s%d, s%d, 1" % (sIdx, sIdx))
        f.append("s_add_u32 s%d, s%d, 0x8000" % (sSrc, sSrc))
        f.append("s_add_u32 s%d, s%d, 0x%x" % (sT1, sKV, 0x4000 if isV else 0))
        f.append("s_cmp_eq_u32 s%d, s%d" % (sIdx, sN1))
        f.append("s_cselect_b32 s%d, s%d, s%d" % (sSrc, sT1, sSrc))
        return f

    def dmaA(slot, oob=False):
        f = ["s_add_u32 m0, s%d, 0x%x" % (sWoffA, LDS_A + slot * 8192)]
        f.append("s_cmp_lt_u32 s%d, s%d" % (sAsrc, sA))
        f.append("s_cselect_b32 s%d, s%d, 0x7ff00000" % (sT1, sAsrc))
        for p in range(2):
            f.append("buffer_load_dwordx4 v%d, %s, s%d offen offset:%d lds" % (aDm2, WSR, sT1, p * 1024))
        f.append("s_add_u32 s%d, s%d, 0x2000" % (sAsrc, sAsrc))
        return f

    e("s_lshl_b32 s%d, s%d, 15" % (sKsrc, sKb0a))
    e("s_add_u32 s%d, s%d, s%d" % (sKsrc, sKsrc, sKV))
    e("s_add_u32 s%d, s%d, 0x4000" % (sVsrc, sKsrc))
    e("s_mov_b32 s%d, 0" % sKt)
    e("s_mov_b32 s%d, 0" % sVt)
    e("s_mov_b32 s%d, s%d" % (sAsrc, sKVA))
    e("s_add_u32 s%d, s%d, 0x40000" % (sA, sKVA))
    e("s_lshl_b32 s%d, s%d, 6" % (sT0, sH))
    e("s_add_u32 s%d, s%d, s%d" % (sT0, sT0, sQ32))
    e("s_lshl_b32 s%d, s%d, 11" % (sT0, sT0))
    e("s_add_u32 s%d, s%d, 0x%x" % (sT0, sT0, WS_QA))
    for s in range(2):
        e("buffer_load_dwordx4 %s, v%d, %s, s%d offen offset:%d" % (vr(AQ + 4 * s, 4), aL16, WSR, sT0, s * 1024))
    e("v_and_b32 v3, 31, v2")
    e("v_lshlrev_b32 v3, 2, v3")
    e("s_lshl_b32 s%d, s%d, 7" % (sT0, sQ32))
    e("s_add_u32 s%d, s%d, 0x%x" % (sT0, sT0, WS_G))
    e("buffer_load_dword v%d, v3, %s, s%d offen" % (aG, WSR, sT0))
    pro = dmaB(0, 0) + dmaA(0)
    pro += dmaB(0, 1) + dmaA(1) + dmaB(1, 0)
    pro += ["s_nop 0"] * 0
    pro2 = dmaB(0, 2) + dmaA(2) + dmaB(1, 1)
    for f in pro + pro2:
        e(f)
    for r in range(16):
        e("v_mov_b32 v%d, 0" % (AO + r))

    def kread(kf, slot, tile):
        return ["ds_read_b128 %s, v%d offset:%d" % (vr(KF[kf] + 4 * s, 4), aK, slot * 8192 + tile * 4096 + s * 1024) for s in range(2)]

    def vread(slot, tile):
        return ["ds_read_b64_tr_b16 %s, v%d offset:%d" % (vr(VF + 4 * t + 2 * u, 2), aV, slot * 8192 + tile * 4096 + t * 1024 + u * 512)
                for t in range(2) for u in range(2)]

    def qk(sb, kf, cz=False):
        return ["v_mfma_f32_32x32x16_bf16 %s, %s, %s, %s" % (vr(AS[sb], 16), vr(KF[kf], 4), vr(AQ, 4), "0" if cz else vr(NM, 16)),
                "v_mfma_f32_32x32x16_bf16 %s, %s, %s, %s" % (vr(AS[sb], 16), vr(KF[kf] + 4, 4), vr(AQ + 4, 4), vr(AS[sb], 16))]

    def amaxops(sb):
        b = AS[sb]
        ops = ["v_max3_f32 v%d, v%d, v%d, v%d" % (aTm, b, b + 1, b + 2)]
        for k in range(3, 15, 2):
            ops.append("v_max3_f32 v%d, v%d, v%d, v%d" % (aTm, aTm, b + k, b + k + 1))
        ops.append("v_max_f32 v%d, v%d, v%d" % (aTm, aTm, b + 15))
        return ops

    def xhalf_max():
        e("v_mov_b32 v%d, v%d" % (aT1, aTm))
        e("s_nop 1")
        e("v_permlane32_swap_b32 v%d, v%d" % (aTm, aT1))
        e("s_nop 1")
        e("v_max_f32 v%d, v%d, v%d" % (aTm, aTm, aT1))

    aslow = []
    sAi = 51
    e("s_mov_b32 s%d, 0" % sAi)
    e("s_mov_b32 s52, 0x7ff00000")
    a.label("K2A_LOOP")
    for ph in range(4):
        e("s_waitcnt vmcnt(14) lgkmcnt(0)")
        e("s_barrier")
        dm = dmaB(0, (ph + 3) & 3) + dmaA((ph + 3) & 3) + dmaB(1, (ph + 2) & 3)
        if ph == 0:
            lab = a.newlabel("K2A_NOINIT")
            e("s_cmp_lg_u32 s%d, 0" % sAi)
            e("s_cbranch_scc1 %s" % lab)
            for f in kread(0, 0, 0) + kread(1, 0, 1):
                e(f)
            e("s_waitcnt lgkmcnt(2)")
            for m in qk(0, 0, cz=True):
                e(m)
            e("s_nop 7")
            e("s_nop 7")
            for op in amaxops(0):
                e(op)
            xhalf_max()
            for r in range(16):
                e("v_sub_f32 v%d, v%d, v%d" % (AS[0] + r, AS[0] + r, aTm))
                e("v_sub_f32 v%d, 0, v%d" % (NM + r, aTm))
            e("s_nop 1")
            a.label(lab)
        half = (len(dm) + 1) // 2
        if os.environ.get("NOA"):
            for f in dm:
                e(f)
            continue
        if os.environ.get("NODMA"):
            dm = [f.replace("s%d offen offset" % sT1, "s52 offen offset") for f in dm]
        for tl in range(2):
            cur, nxt = tl, 1 - tl
            b = AS[cur]
            dmi = dm[:half] if tl == 0 else dm[half:]
            e("s_waitcnt lgkmcnt(0)")
            m = qk(nxt, nxt)
            e(m[0])
            for f in vread(ph, tl):
                e(f)
            e(m[1])
            for f in kread(cur, (ph + 1) & 3, tl):
                e(f)
            k2 = 0
            for i in range(16 + 2):
                if i < 16:
                    e("v_exp_f32 v%d, v%d" % (b + i, b + i))
                k = i - 2
                if k >= 0 and (k & 1):
                    e("v_cvt_pk_bf16_f32 v%d, v%d, v%d" % (b + (k >> 1), b + k - 1, b + k))
                tgt = ((i + 1) * len(dmi)) // 18
                while k2 < tgt:
                    e(dmi[k2]); k2 += 1
            mo = amaxops(nxt)
            e(mo[0])
            e("s_waitcnt lgkmcnt(2)")
            e("v_mfma_f32_32x32x16_bf16 %s, %s, %s, %s" % (vr(AO, 16), vr(VF, 4), vr(b, 4), vr(AO, 16)))
            for op in mo[1:5]:
                e(op)
            e("v_mfma_f32_32x32x16_bf16 %s, %s, %s, %s" % (vr(AO, 16), vr(VF + 4, 4), vr(b + 4, 4), vr(AO, 16)))
            for op in mo[5:]:
                e(op)
            e("v_cmp_lt_f32 vcc, s%d, v%d" % (sThr, aTm))
            e("s_cbranch_vccnz K2A_SLOW%d_%d" % (ph, tl))
            a.label("K2A_BACK%d_%d" % (ph, tl))
            aslow.append((ph, tl, nxt))
    e("s_add_u32 s%d, s%d, 4" % (sAi, sAi))
    if YF:
        e("s_cmp_lg_u32 s%d, %d" % (sAi, int(os.environ.get("WPFA", "24"))))
        e("s_cbranch_scc1 K2A_NOWPF")
        e("s_bfe_u32 s%d, s2, 0x40004" % sT0)
        e("s_lshl_b32 s%d, s%d, 2" % (sT0, sT0))
        e("s_add_u32 s%d, s%d, s%d" % (sT0, sT0, sWa))
        e("v_lshrrev_b32 v%d, 4, v%d" % (aPF, aL16))
        e("v_min_u32 v%d, 27, v%d" % (aPFs, aPF))
        e("v_lshlrev_b32 v%d, 7, v%d" % (aPFs, aPFs))
        e("s_mul_i32 s%d, s%d, 229376" % (sT1, sH))
        e("s_mul_i32 s%d, s%d, 3584" % (sT2, sT0))
        e("s_add_u32 s%d, s%d, s%d" % (sT1, sT1, sT2))
        e("buffer_load_dword v%d, v%d, s[64:67], s%d offen" % (aPFd, aPFs, sT1))
        e("v_min_u32 v%d, 3, v%d" % (aPFs, aPF))
        e("v_lshlrev_b32 v%d, 7, v%d" % (aPFs, aPFs))
        e("s_mul_i32 s%d, s%d, 25088" % (sT1, sH))
        e("s_lshl_b32 s%d, s%d, 9" % (sT2, sT0))
        e("s_add_u32 s%d, s%d, s%d" % (sT1, sT1, sT2))
        e("buffer_load_dword v%d, v%d, s[68:71], s%d offen" % (aPFd, aPFs, sT1))
        a.label("K2A_NOWPF")
    e("s_cmp_lt_u32 s%d, 32" % sAi)
    e("s_cbranch_scc1 K2A_LOOP")
    e("s_lshl_b32 s%d, s%d, 3" % (sT0, sH))
    e("s_add_u32 s%d, s%d, s%d" % (sT0, sT0, sI))
    e("s_lshl_b32 s%d, s%d, 2" % (sT0, sT0))
    e("s_add_u32 s%d, s%d, s%d" % (sT0, sT0, sWa))
    e("s_mul_i32 s%d, s%d, %d" % (sPart, sT0, PART_WAVE))
    e("s_add_u32 s%d, s%d, 0x%x" % (sPart, sPart, WS_PART))
    e("s_lshl_b32 s%d, s%d, 7" % (sFlag, sT0))
    e("s_add_u32 s%d, s%d, 0x%x" % (sFlag, sFlag, WS_FLAG))
    e("v_mov_b32 v%d, 0" % aPF)
    e("buffer_load_dword v%d, v%d, %s, s%d offen sc1" % (aPFd, aPF, WSR, sFlag))
    e("s_nop 7")
    e("s_nop 7")
    e("v_mov_b32 v%d, v%d" % (aT1, AO + 12))
    e("v_mov_b32 v%d, v%d" % (aT2, AO + 12))
    e("s_nop 1")
    e("v_permlane32_swap_b32 v%d, v%d" % (aT1, aT2))
    e("s_nop 1")
    e("v_rcp_f32 v%d, v%d" % (aT2, aT2))
    e("s_nop 0")
    e("v_mul_f32 v%d, v%d, v%d" % (aT2, aT2, aG))
    for r in range(16):
        e("v_mul_f32 v%d, v%d, v%d" % (AO + r, AO + r, aT2))
    e("s_mov_b32 exec_lo, 0")
    for r in range(12, 16):
        e("v_mov_b32 v%d, 0" % (AO + r))
    e("s_mov_b32 exec_lo, -1")
    for r in range(8):
        e("v_cvt_pk_bf16_f32 v%d, v%d, v%d" % (AS[0] + r, AO + 2 * r, AO + 2 * r + 1))
    if not YF:
        e("s_mul_i32 s%d, s%d, 288" % (sT0, sQ32))
        e("s_lshl_b32 s%d, s%d, 1" % (sT1, sH))
        e("s_add_u32 s%d, s%d, s%d" % (sT0, sT0, sT1))
        e("s_add_u32 s%d, s%d, 256" % (sT0, sT0))
        e("s_lshl_b32 s%d, s%d, 10" % (sT0, sT0))
        e("s_add_u32 s%d, s%d, 0x%x" % (sT0, sT0, WS_CTX))
        for t in range(2):
            e("buffer_store_dwordx4 %s, v%d, %s, s%d offen offset:%d" % (vr(AS[0] + 4 * t, 4), aL16, WSR, sT0, t * 1024))
    if int(os.environ.get("PPF", "0")):
        e("s_cmp_lg_u32 s%d, 2" % sMode)
        e("s_cbranch_scc1 K2A_TAIL")
        e("s_waitcnt vmcnt(0)")
        e("v_readfirstlane_b32 s%d, v%d" % (sT0, aPFd))
        e("s_cmp_lg_u32 s%d, 1" % sT0)
        e("s_cbranch_scc1 K2A_TAIL")
        e("v_lshlrev_b32 v%d, 3, v%d" % (aPF, aL16))
        for k in range(5):
            if k == 4:
                e("v_and_b32 v%d, 0x380, v%d" % (aPF, aPF))
            e("buffer_load_dword v%d, v%d, %s, s%d offen" % (aPFd, aPF, WSR, sPart))
            e("s_add_u32 s%d, s%d, 8192" % (sPart, sPart))
    a.label("K2A_TAIL")
    e("s_cmp_gt_u32 s%d, s%d" % (sAi, sTT))
    e("s_cbranch_scc1 K2A_Y")
    e("s_waitcnt vmcnt(8)")
    e("s_barrier")
    for f in dmaB(0, None) + dmaB(1, None):
        e(f)
    e("s_add_u32 s%d, s%d, 1" % (sAi, sAi))
    e("s_branch K2A_TAIL")
    a.label("K2A_Y")
    if YF:
        SWB, SWA = 64, 68
        yV = 110
        sU, sNu, sRowB, sRowA = sKsrc, sVsrc, sAsrc, sA
        e("v_lshrrev_b32 v2, 4, v%d" % aL16)
        e("v_lshrrev_b32 v3, 3, v2")
        e("v_and_b32 v4, 7, v2")
        e("v_bfe_u32 v5, v2, 4, 1")
        e("v_lshlrev_b32 v5, 2, v5")
        e("v_xor_b32 v4, v4, v5")
        e("v_lshlrev_b32 v4, 4, v4")
        e("v_mul_u32_u24 v3, 896, v3")
        e("v_add_u32 v%d, v3, v4" % yV)
        for p in range(1, 4):
            e("v_add_u32 v%d, %d, v%d" % (yV + p, p * (8 * 896 - 1024), yV))
        e("s_lshl_b32 s%d, s%d, 8" % (sRowB, sH))
        e("s_lshl_b32 s%d, s%d, 6" % (sT0, sWa))
        e("s_add_u32 s%d, s%d, s%d" % (sRowB, sRowB, sT0))
        e("s_mul_i32 s%d, s%d, 896" % (sRowB, sRowB))
        e("s_mul_i32 s%d, s%d, 28" % (sRowA, sH))
        e("s_lshl_b32 s%d, s%d, 3" % (sT0, sWa))
        e("s_add_u32 s%d, s%d, s%d" % (sRowA, sRowA, sT0))
        e("s_mul_i32 s%d, s%d, 896" % (sRowA, sRowA))
        e("s_sub_u32 s%d, s%d, 7" % (sT0, sI))
        e("s_cmp_ge_u32 s%d, 7" % sI)
        e("s_cselect_b32 s%d, s%d, s%d" % (sNu, sT0, sI))

        def yunit(slot):
            e("s_lshl_b32 s%d, s%d, 7" % (sT0, sNu))
            e("s_lshl_b32 s%d, s%d, 13" % (sT2, sWa))
            for g in range(2):
                e("s_add_u32 m0, s%d, %d" % (sT2, slot * YU + g * 4096))
                e("s_add_u32 s%d, s%d, s%d" % (sT1, sRowB, sT0))
                if g:
                    e("s_add_u32 s%d, s%d, %d" % (sT1, sT1, 32 * 896))
                for p in range(4):
                    e("buffer_load_dwordx4 v%d, %s, s%d offen offset:%d lds" % (yV + p, sr(SWB, 4), sT1, p * 1024))
            e("s_lshl_b32 s%d, s%d, 10" % (sT2, sWa))
            e("s_add_u32 m0, s%d, %d" % (sT2, slot * YU + 32768))
            e("s_add_u32 s%d, s%d, s%d" % (sT1, sRowA, sT0))
            e("buffer_load_dwordx4 v%d, %s, s%d offen lds" % (yV, sr(SWA, 4), sT1))
            e("s_add_u32 s%d, s%d, 1" % (sNu, sNu))
            e("s_cmp_ge_u32 s%d, 7" % sNu)
            e("s_cselect_b32 s%d, 0, s%d" % (sNu, sNu))
        e("s_waitcnt vmcnt(0) lgkmcnt(0)")
        e("s_barrier")
        for u in range(4):
            yunit(u)
        e("s_lshl_b32 s%d, s%d, 11" % (sT0, sWa))
        e("s_add_u32 s%d, s%d, %d" % (sT0, sT0, 4 * YU))
        e("v_add_u32 v%d, s%d, v%d" % (aT1, sT0, aL16))
        e("ds_write_b128 v%d, %s" % (aT1, vr(AS[0], 4)))
        e("ds_write_b128 v%d, %s offset:1024" % (aT1, vr(AS[0] + 4, 4)))
        issued = 4
        for u in range(7):
            e("s_waitcnt vmcnt(%d) lgkmcnt(0)" % (9 * (issued - u - 1)))
            e("s_barrier")
            if u >= 1 and issued < 7:
                yunit(issued & 3)
                issued += 1
    e("s_branch K2_DONE" if BW else "s_branch K2_END")
    for ph, tl, sb in aslow:
        a.label("K2A_SLOW%d_%d" % (ph, tl))
        e("s_nop 7")
        e("s_nop 7")
        xhalf_max()
        e("v_max_f32 v%d, 0, v%d" % (aTm, aTm))
        e("v_sub_f32 v%d, 0, v%d" % (aT1, aTm))
        e("v_exp_f32 v%d, v%d" % (aT1, aT1))
        for r in range(16):
            e("v_sub_f32 v%d, v%d, v%d" % (AS[sb] + r, AS[sb] + r, aTm))
            e("v_sub_f32 v%d, v%d, v%d" % (NM + r, NM + r, aTm))
            e("v_mul_f32 v%d, v%d, v%d" % (AO + r, AO + r, aT1))
        e("s_nop 1")
        e("s_branch K2A_BACK%d_%d" % (ph, tl))
    a.label("K2_END")
    e("s_endpgm")
    return kernel_desc(name, 256, 96, 256)
```

```python
import struct, os
from asmlib import *
from layout import *

LAUNCH = "; @launch kernel=k2_attn_kernel grid=(256,1,1) block=(512,1,1) lds=163840"
SPLIT = int(os.environ.get("SPLIT", "36"))
THR = float(os.environ.get("THR", "32"))
PART_WAVE = 33 * 1024
PFD = int(os.environ.get("PFD", "1"))
BPRIO = int(os.environ.get("BPRIO", "0"))
YF = int(os.environ.get("YF", "1"))
RED = int(os.environ.get("RED", "1"))
KROT = int(os.environ.get("KROT", "3"))
WS_Y = 128 << 20
YU = 36864
LDS_A = 0x20000


def f32hex(x):
    return "0x%08x" % struct.unpack("<I", struct.pack("<f", x))[0]


def gen_k2(a, name="k2_attn_kernel"):
    e0 = a.e
    BW = os.environ.get("BARW")

    def e(s):
        if BW and s == "s_barrier":
            e0("s_memtime s[56:57]")
            e0("s_waitcnt lgkmcnt(0)")
            e0("s_barrier")
            e0("s_memtime s[58:59]")
            e0("s_waitcnt lgkmcnt(0)")
            e0("s_sub_u32 s61, s58, s56")
            e0("s_add_u32 s60, s60, s61")
        else:
            e0(s)
    SWS = 4
    WSR = sr(SWS, 4)
    sW, sH, sI, sRole = 8, 9, 10, 11
    sQb, sKb0, sKb1, sMode = 12, 13, 14, 15
    sJw, sJ, sSeg = 16, 17, 18
    sKV = 19
    sN1, sTT = 20, 21
    sKb0a = 22
    sT = 23
    sC, sThrAdd = 24, 25
    sWoff = 26
    sT0, sT1, sT2, sT3 = 27, 28, 29, 30
    sPart, sFlag = 31, 32
    sEnd = 33
    sSpin = 34
    sInit, sPend = 35, 44
    C = LOG2E / 16.0

    a.raw(".p2align 8")
    a.label(name)
    e("s_cmp_ge_u32 s2, 256")
    e("s_cbranch_scc1 K2_END")
    stamp(a, 0)
    stamp(a, 8, real=True)
    e("s_load_dwordx2 s[36:37], s[0:1], 96")
    e("s_mov_b32 s60, 0")
    e("s_load_dwordx2 s[64:65], s[0:1], 64")
    e("s_load_dwordx2 s[66:67], s[0:1], 16")
    e("s_load_dwordx2 s[62:63], s[0:1], 80")
    e("v_lshrrev_b32 v1, 6, v0")
    e("v_and_b32 v2, 63, v0")
    e("v_readfirstlane_b32 s%d, v1" % sW)
    e("s_lshr_b32 s%d, s2, 7" % sRole)
    e("s_and_b32 s%d, s2, 7" % sT0)
    e("s_lshl_b32 s%d, s%d, 1" % (sH, sT0))
    e("s_bfe_u32 s%d, s2, 0x10003" % sT0)
    e("s_add_u32 s%d, s%d, s%d" % (sH, sH, sT0))
    e("s_bfe_u32 s%d, s2, 0x30004" % sI)
    e("s_lshl_b32 s%d, s%d, 21" % (sKV, sH))
    e("s_sub_u32 s%d, 15, s%d" % (sQb, sI))
    e("s_lshl_b32 s%d, s%d, 2" % (sT0, sQb))
    e("s_add_u32 s%d, s%d, 4" % (sT0, sT0))
    e("s_cmp_eq_u32 s%d, 0" % sRole)
    e("s_cbranch_scc1 K2_PROD")
    e("s_mov_b32 s%d, 0" % sKb0)
    e("s_min_u32 s%d, s%d, %d" % (sKb1, sT0, SPLIT))
    e("s_cmp_gt_u32 s%d, %d" % (sT0, SPLIT))
    e("s_cselect_b32 s%d, 2, 0" % sMode)
    e("s_mov_b32 s%d, s%d" % (sN1, sKb1))
    e("s_mov_b32 s%d, s%d" % (sTT, sKb1))
    e("s_mov_b32 s%d, 1" % sSeg)
    e("s_branch K2_SETUP_DONE")
    a.label("K2_PROD")
    e("s_lshl_b32 s%d, s%d, 2" % (sT1, sI))
    e("s_add_u32 s%d, s%d, 4" % (sT1, sT1))
    e("s_cmp_gt_u32 s%d, %d" % (sT0, SPLIT))
    e("s_cbranch_scc1 K2_PROD2")
    e("s_mov_b32 s%d, s%d" % (sQb, sI))
    e("s_mov_b32 s%d, 0" % sKb0)
    e("s_mov_b32 s%d, s%d" % (sKb1, sT1))
    e("s_mov_b32 s%d, 0" % sMode)
    e("s_mov_b32 s%d, s%d" % (sN1, sT1))
    e("s_mov_b32 s%d, s%d" % (sTT, sT1))
    e("s_mov_b32 s%d, 1" % sSeg)
    e("s_branch K2_SETUP_DONE")
    a.label("K2_PROD2")
    e("s_mov_b32 s%d, %d" % (sKb0, SPLIT))
    e("s_mov_b32 s%d, s%d" % (sKb1, sT0))
    e("s_mov_b32 s%d, 1" % sMode)
    e("s_sub_u32 s%d, s%d, %d" % (sN1, sT0, SPLIT))
    e("s_add_u32 s%d, s%d, s%d" % (sTT, sN1, sT1))
    e("s_mov_b32 s%d, 0" % sSeg)
    a.label("K2_SETUP_DONE")
    e("s_mov_b32 s%d, s%d" % (sKb0a, sKb0))
    e("s_waitcnt lgkmcnt(0)")
    e("s_mov_b32 s%d, s36" % SWS)
    e("s_mov_b32 s%d, s37" % (SWS + 1))
    e("s_mov_b32 s%d, 0x%x" % (SWS + 2, WS_BYTES))
    e("s_mov_b32 s%d, 0x20000" % (SWS + 3))
    e("s_cmp_ge_u32 s%d, 4" % sW)
    e("s_cbranch_scc1 K2_AWAVE")

    O = 0
    Q = 128
    S = [192, 208]
    FR = 224
    NFR = 6
    vL16, vV, vMc, vL, vThr, vTm, vT1, vT2 = 248, 249, 250, 251, 252, 253, 254, 255
    BSEQ = list(range(6)) * 2 + list(range(5)) * 4
    assert len(BSEQ) == 32
    prev_user = {}
    for m in range(32):
        k = 1
        while BSEQ[(m - k) % 32] != BSEQ[m]:
            k += 1
        prev_user[m] = max(m - k, m - 6)
    if BPRIO:
        e("s_setprio %d" % BPRIO)
    e("v_lshlrev_b32 v%d, 4, v2" % vL16)
    e("v_add_u32 v%d, 0x10000, v%d" % (vV, vL16))
    e("s_mov_b32 s%d, %s" % (sC, f32hex(C)))
    e("s_mov_b32 s%d, %s" % (sThrAdd, f32hex(THR)))
    e("s_mov_b32 s%d, -1" % sPend)
    e("s_lshl_b32 s%d, s%d, 3" % (sT0, sH))
    e("s_add_u32 s%d, s%d, s%d" % (sT0, sT0, sI))
    e("s_lshl_b32 s%d, s%d, 2" % (sT0, sT0))
    e("s_add_u32 s%d, s%d, s%d" % (sT0, sT0, sW))
    e("s_mul_i32 s%d, s%d, %d" % (sPart, sT0, PART_WAVE))
    e("s_add_u32 s%d, s%d, 0x%x" % (sPart, sPart, WS_PART))
    e("s_lshl_b32 s%d, s%d, 7" % (sFlag, sT0))
    e("s_add_u32 s%d, s%d, 0x%x" % (sFlag, sFlag, WS_FLAG))
    e("s_mov_b32 s%d, 0" % sT)
    e("s_mov_b32 s%d, 1" % sSpin)

    def load_q():
        e("s_lshl_b32 s%d, s%d, 6" % (sT0, sH))
        e("s_lshl_b32 s%d, s%d, 2" % (sT1, sQb))
        e("s_add_u32 s%d, s%d, s%d" % (sJw, sT1, sW))
        e("s_add_u32 s%d, s%d, s%d" % (sT0, sT0, sJw))
        e("s_lshl_b32 s%d, s%d, 14" % (sT0, sT0))
        e("s_add_u32 s%d, s%d, 0x%x" % (sT0, sT0, WS_QB))
        for s in range(16):
            if s and s % 4 == 0:
                e("s_add_u32 s%d, s%d, 4096" % (sT0, sT0))
            e("buffer_load_dwordx4 %s, v%d, %s, s%d offen offset:%d" % (vr(Q + 4 * s, 4), vL16, WSR, sT0, (s % 4) * 1024))

    load_q()
    a.label("K2_SEG")
    for r in range(128):
        e("v_mov_b32 v%d, 0" % (O + r))
    e("v_mov_b32 v%d, 0" % vL)
    e("v_mov_b32 v%d, %s" % (vMc, f32hex(-1e30 * C)))
    e("s_sub_u32 s%d, s%d, 1" % (sT0, sKb1))
    e("s_min_u32 s%d, s%d, s%d" % (sEnd, sT0, sJw))
    e("s_mov_b32 s%d, s%d" % (sJ, sKb0))
    e("s_cmp_eq_u32 s%d, 0" % sSpin)
    e("s_cbranch_scc1 K2_NOBAR")
    e("s_barrier")
    e("s_mov_b32 s%d, 0" % sSpin)
    e("s_waitcnt vmcnt(0)")
    a.label("K2_NOBAR")
    e("s_waitcnt vmcnt(33) lgkmcnt(0)")
    stamp(a, 1)
    stamp(a, 5, real=True)
    if STAMP:
        e("s_waitcnt lgkmcnt(0)")

    def fr(m):
        return vr(FR + 4 * BSEQ[m % 32], 4)

    def qk_mfma(s, sb, f):
        return "v_mfma_f32_32x32x16_bf16 %s, %s, %s, %s" % (
            vr(S[sb], 16), f, vr(Q + 4 * s, 4), "0" if s == 0 else vr(S[sb], 16))

    def pv_mfma(n, sb, f):
        db, t = n >> 1, n & 1
        return "v_mfma_f32_32x32x16_bf16 %s, %s, %s, %s" % (
            vr(O + 16 * db, 16), f, vr(S[sb] + 4 * t, 4), vr(O + 16 * db, 16))

    def rdK(f, slot, chunk):
        return "ds_read_b128 %s, v%d offset:%d" % (f, vL16, slot * 16384 + chunk * 1024)

    def rdV(f, slot, chunk):
        return "ds_read_b128 %s, v%d offset:%d" % (f, vV, slot * 16384 + chunk * 1024)

    def softmax_ops(sb):
        b = S[sb]
        ops = []
        for i in range(16 + 2):
            if i < 16:
                ops.append("v_exp_f32 v%d, v%d" % (b + i, b + i))
            k = i - 2
            if 0 <= k < 16:
                ops.append("v_add_f32 v%d, v%d, v%d" % (vL, vL, b + k))
                if k & 1:
                    ops.append("v_cvt_pk_bf16_f32 v%d, v%d, v%d" % (b + (k >> 1), b + k - 1, b + k))
        return ops

    def fma_ops(sb):
        b = S[sb]
        return ["v_fma_f32 v%d, v%d, s%d, -v%d" % (b + i, b + i, sC, vMc) for i in range(16)]

    def max_ops(sb):
        b = S[sb]
        ops = ["v_max3_f32 v%d, v%d, v%d, v%d" % (vTm, b, b + 1, b + 2)]
        for k in range(3, 15, 2):
            ops.append("v_max3_f32 v%d, v%d, v%d, v%d" % (vTm, vTm, b + k, b + k + 1))
        ops.append("v_max_f32 v%d, v%d, v%d" % (vTm, vTm, b + 15))
        ops.append("v_cmp_lt_f32 vcc, s%d, v%d" % (sThrAdd, vTm))
        return ops

    def fmamax_ops(sb):
        f = fma_ops(sb)
        m = max_ops(sb)
        ops = f[0:4] + [m[0]]
        for k in range(6):
            ops += f[4 + 2 * k:6 + 2 * k] + [m[1 + k]]
        ops += m[7:]
        return ops

    def slow_path(sb, lab):
        pass

    def emit_slow(sb, lab, back):
        a.label(lab)
        b = S[sb]
        nomask = a.newlabel("K2_NOMASK")
        ret = a.newlabel("K2_SLOWRET")
        resc = a.newlabel("K2_RESC")
        e("s_cmp_lg_u32 s%d, s%d" % (sJ, sJw))
        e("s_cbranch_scc1 %s" % nomask)
        e("v_bfe_u32 v%d, v%d, 4, 5" % (vT2, vL16))
        e("v_lshrrev_b32 v%d, 9, v%d" % (vT1, vL16))
        e("v_lshlrev_b32 v%d, 2, v%d" % (vT1, vT1))
        e("v_sub_u32 v%d, v%d, v%d" % (vT2, vT2, vT1))
        e("v_mov_b32 v%d, %s" % (vT1, f32hex(-1e30)))
        for i in range(0, 16, 2):
            for j in (0, 1):
                kk = 8 * ((i + j) >> 2) + ((i + j) & 3)
                e("v_cmp_gt_i32 s[%d:%d], %d, v%d" % (40 + 2 * j, 41 + 2 * j, kk, vT2))
            e("s_nop 0")
            for j in (0, 1):
                e("v_cndmask_b32 v%d, v%d, v%d, s[%d:%d]" % (b + i + j, b + i + j, vT1, 40 + 2 * j, 41 + 2 * j))
        a.label(nomask)
        for op in max_ops(sb):
            e(op)
        e("s_cmp_lg_u32 s%d, 0" % sInit)
        e("s_cbranch_scc1 %s" % resc)
        e("s_cbranch_vccz %s" % ret)
        a.label(resc)
        e("v_mov_b32 v%d, v%d" % (vT1, vTm))
        e("s_nop 1")
        e("v_permlane32_swap_b32 v%d, v%d" % (vTm, vT1))
        e("s_nop 1")
        e("v_max_f32 v%d, v%d, v%d" % (vTm, vTm, vT1))
        noclamp = a.newlabel("K2_NOCLAMP")
        e("s_cbranch_scc1 %s" % noclamp)
        e("v_max_f32 v%d, 0, v%d" % (vTm, vTm))
        e("v_sub_f32 v%d, 0, v%d" % (vT2, vTm))
        e("v_exp_f32 v%d, v%d" % (vT2, vT2))
        e("s_nop 7")
        e("v_mul_f32 v%d, v%d, v%d" % (vL, vL, vT2))
        for r in range(128):
            e("v_mul_f32 v%d, v%d, v%d" % (O + r, O + r, vT2))
        a.label(noclamp)
        e("v_add_f32 v%d, v%d, v%d" % (vMc, vMc, vTm))
        for i in range(16):
            e("v_sub_f32 v%d, v%d, v%d" % (b + i, b + i, vTm))
        e("s_mov_b32 s%d, 0" % sInit)
        a.label(ret)
        e("s_nop 1")
        e("s_setpc_b64 s[38:39]")

    def call_slow(sb, back):
        pass

    e("s_and_b32 s%d, s%d, 3" % (sT0, sT))
    for ph in range(1, 4):
        e("s_cmp_eq_u32 s%d, %d" % (sT0, ph))
        e("s_cbranch_scc1 K2_PRE%d" % ph)
    head_reads = [m for m in range(32) if prev_user[m] < 0]
    for ph in range(4):
        a.label("K2_PRE%d" % ph)
        cur = ph & 1
        e("s_cmp_lt_i32 s%d, s%d" % (sEnd, sKb0))
        e("s_cbranch_scc1 K2_STEP%d" % ph)
        for s in range(5):
            e(rdK(vr(FR + 4 * s, 4), ph, s))
        for s in range(16):
            e("s_waitcnt lgkmcnt(%d)" % min(4, 15 - s))
            e(qk_mfma(s, cur, vr(FR + 4 * (s % 6), 4)))
            if s + 5 < 16:
                e(rdK(vr(FR + 4 * ((s + 5) % 6), 4), ph, s + 5))
        for m in head_reads:
            e(rdK(fr(m), (ph + 1) & 3, m))
        e("v_mov_b32 v%d, 0" % vMc)
        e("s_mov_b32 s%d, 1" % sInit)
        e("s_nop 7")
        for f in fma_ops(cur):
            e(f)
        e("s_call_b64 s[38:39], K2_SLOW%d" % cur)
        e("s_branch K2_STEP%d" % ph)

    for ph in range(4):
        cur, nxt = ph & 1, 1 - (ph & 1)
        kslot, vslot, k2slot = (ph + 1) & 3, ph, (ph + 2) & 3
        a.label("K2_STEP%d" % ph)
        e("s_cmp_ge_u32 s%d, s%d" % (sJ, sKb1))
        e("s_cbranch_scc1 K2_SEG_END")
        e("s_cmp_eq_u32 s%d, s%d" % (sJ, sPend))
        e("s_cbranch_scc1 K2_FLAG%d" % ph)
        a.label("K2_FLAGBACK%d" % ph)
        e("s_barrier")
        e("s_cmp_ge_i32 s%d, s%d" % (sJ, sEnd))
        e("s_cbranch_scc1 K2_LAST%d" % ph)
        def rdn(m):
            if m < 16:
                return rdK(fr(m), kslot, m)
            if m < 32:
                return rdV(fr(m), vslot, m - 16)
            return rdK(fr(m), k2slot, m - 32)
        after = {n: [] for n in range(32)}
        for m in range(32):
            pu = prev_user[m]
            if pu >= 0:
                after[pu].append(m)
            else:
                after[pu + 32].append(m + 32)
        fx = softmax_ops(cur)
        fy = fmamax_ops(nxt)

        def share(lst, g, ng):
            return lst[(g * len(lst)) // ng:((g + 1) * len(lst)) // ng]
        issued = list(head_reads)
        for n in range(32):
            if n % 2 == 0:
                last = max(issued.index(n), issued.index(n + 1))
                e("s_waitcnt lgkmcnt(%d)" % (len(issued) - 1 - last))
            e(qk_mfma(n, nxt, fr(n)) if n < 16 else pv_mfma(n - 16, cur, fr(n)))
            for m in after[n]:
                e(rdn(m))
                issued.append(m)
            if n < 15:
                for f in share(fx, n, 15):
                    e(f)
            if 20 <= n < 31:
                for f in share(fy, n - 20, 11):
                    e(f)
            if n == 29:
                e("s_add_u32 s%d, s%d, 1" % (sJ, sJ))
                e("s_add_u32 s%d, s%d, 1" % (sT, sT))
            if n == 30:
                e("s_cmp_eq_u32 s%d, s%d" % (sJ, sJw))
        e("s_cbranch_vccnz K2_TOSLOW%d" % ph)
        e("s_cbranch_scc1 K2_TOSLOW%d" % ph)
        if ph == 3:
            e("s_branch K2_STEP0")
    for ph in range(4):
        cur, nxt = ph & 1, 1 - (ph & 1)
        a.label("K2_TOSLOW%d" % ph)
        e("s_call_b64 s[38:39], K2_SLOW%d" % nxt)
        e("s_branch K2_STEP%d" % ((ph + 1) & 3))
        a.label("K2_LAST%d" % ph)
        e("s_cmp_gt_i32 s%d, s%d" % (sJ, sEnd))
        e("s_cbranch_scc1 K2_IDLE%d" % ph)
        e("v_bfe_u32 v%d, v%d, 4, 5" % (vT1, vL16))
        e("v_lshlrev_b32 v%d, 2, v%d" % (vT1, vT1))
        e("s_lshl_b32 s%d, s%d, 7" % (sT0, sJw))
        e("s_add_u32 s%d, s%d, 0x%x" % (sT0, sT0, WS_G + 8192))
        e("buffer_load_dword v%d, v%d, %s, s%d offen" % (vThr, vT1, WSR, sT0))
        e("v_mov_b32 v%d, 0" % vT2)
        e("buffer_load_dword v%d, v%d, %s, s%d offen sc1" % (vTm, vT2, WSR, sFlag))
        e("s_waitcnt lgkmcnt(0)")
        for n in range(5):
            e(rdV(vr(FR + 4 * n, 4), ph, n))
        for f in softmax_ops(cur):
            e(f)
        e("s_nop 1")
        for n in range(16):
            e("s_waitcnt lgkmcnt(%d)" % min(4, 15 - n))
            e(pv_mfma(n, cur, vr(FR + 4 * (n % 6), 4)))
            if n + 5 < 16:
                e(rdV(vr(FR + 4 * ((n + 5) % 6), 4), ph, n + 5))
        a.label("K2_IDLE%d" % ph)
        e("s_add_u32 s%d, s%d, 1" % (sJ, sJ))
        e("s_add_u32 s%d, s%d, 1" % (sT, sT))
        e("s_branch K2_STEP%d" % ((ph + 1) & 3))
    for sb in range(2):
        emit_slow(sb, "K2_SLOW%d" % sb, None)
    for ph in range(4):
        a.label("K2_FLAG%d" % ph)
        e("s_waitcnt vmcnt(0)")
        e("v_mov_b32 v%d, 1" % vT1)
        e("v_mov_b32 v%d, 0" % vT2)
        e("s_mov_b64 exec, 1")
        e("buffer_store_dword v%d, v%d, %s, s%d offen sc1" % (vT1, vT2, WSR, sFlag))
        e("s_mov_b64 exec, -1")
        e("s_mov_b32 s%d, -1" % sPend)
        e("s_branch K2_FLAGBACK%d" % ph)

    a.label("K2_SEG_END")
    stamp(a, 2)
    stamp(a, 6, real=True)
    e("s_nop 7")
    e("s_nop 7")
    e("v_mov_b32 v%d, v%d" % (vT1, vL))
    e("s_nop 1")
    e("v_permlane32_swap_b32 v%d, v%d" % (vL, vT1))
    e("s_nop 1")
    e("v_add_f32 v%d, v%d, v%d" % (vL, vL, vT1))
    e("s_cmp_eq_u32 s%d, 1" % sMode)
    e("s_cbranch_scc1 K2_PUBLISH")
    if YF:
        e("s_waitcnt lgkmcnt(0)")
        e("s_barrier")
    e("s_mul_i32 s%d, s%d, 288" % (sT3, sJw))
    e("s_lshl_b32 s%d, s%d, 4" % (sT1, sH))
    e("s_add_u32 s%d, s%d, s%d" % (sT3, sT3, sT1))
    e("s_lshl_b32 s%d, s%d, 10" % (sT3, sT3))
    e("s_add_u32 s%d, s%d, 0x%x" % (sT3, sT3, WS_CTX))
    e("s_cmp_eq_u32 s%d, 2" % sMode)
    e("s_cbranch_scc1 K2_COMBINE")
    e("v_rcp_f32 v%d, v%d" % (vT2, vL))
    e("s_waitcnt vmcnt(0)")
    e("v_mul_f32 v%d, v%d, v%d" % (vT2, vT2, vThr))

    def store_ctx(db):
        if YF:
            for r in range(8):
                e("v_cvt_pk_bf16_f32 v%d, v%d, v%d" % (O + 16 * db + r, O + 16 * db + 2 * r, O + 16 * db + 2 * r + 1))
            return
        tb = S[0] + 8 * (db & 3)
        for r in range(8):
            e("v_cvt_pk_bf16_f32 v%d, v%d, v%d" % (tb + r, O + 16 * db + 2 * r, O + 16 * db + 2 * r + 1))
        for t in range(2):
            e("buffer_store_dwordx4 %s, v%d, %s, s%d offen offset:%d %s" % (
                vr(tb + 4 * t, 4), vL16, WSR, sT3, ((db & 1) * 2 + t) * 1024, os.environ.get("K2ST", "sc1")))
        if db & 1:
            e("s_add_u32 s%d, s%d, 4096" % (sT3, sT3))

    for db in range(8):
        for r in range(16):
            e("v_mul_f32 v%d, v%d, v%d" % (O + 16 * db + r, O + 16 * db + r, vT2))
        store_ctx(db)
    a.label("K2_NEXT")
    stamp(a, 3)
    if YF:
        vW0, vW1, vB0 = vMc, vL, vThr
        sU, sNu, sY = sKb0, sKb1, sT3
        e("v_lshrrev_b32 v%d, 4, v%d" % (vT1, vL16))
        e("v_lshrrev_b32 v%d, 5, v%d" % (vT2, vT1))
        e("v_bfe_u32 v%d, v%d, 2, 2" % (vTm, vT1))
        e("v_lshl_add_u32 v%d, v%d, 2, v%d" % (vT2, vT2, vTm))
        e("v_lshlrev_b32 v%d, 7, v%d" % (vT2, vT2))
        e("v_bfe_u32 v%d, v%d, 4, 1" % (vTm, vT1))
        e("v_lshl_add_u32 v%d, v%d, 5, v%d" % (vT2, vTm, vT2))
        e("v_and_b32 v%d, 3, v%d" % (vTm, vT1))
        e("v_lshl_add_u32 v%d, v%d, 3, v%d" % (vT2, vTm, vT2))
        e("v_bfe_u32 v%d, v%d, 3, 1" % (vTm, vT1))
        e("v_lshl_add_u32 v%d, v%d, 6, v%d" % (vB0, vTm, vT2))
        e("s_mov_b32 s%d, 0" % sU)
        e("s_sub_u32 s%d, s%d, 7" % (sT0, sI))
        e("s_cmp_ge_u32 s%d, 7" % sI)
        e("s_cselect_b32 s%d, s%d, s%d" % (sNu, sT0, sI))
        e("s_lshl_b32 s%d, s%d, 11" % (sT0, sW))
        e("s_add_u32 s%d, s%d, %d" % (sT0, sT0, 4 * YU))
        e("v_add_u32 v%d, s%d, v%d" % (vT1, sT0, vL16))
        a.label("K2_YLOOP")
        e("s_barrier")
        e("s_cmp_lg_u32 s%d, 0" % sU)
        e("s_cbranch_scc1 K2_YNOA")
        e("ds_read_b128 %s, v%d" % (vr(O + 8, 4), vT1))
        e("ds_read_b128 %s, v%d offset:1024" % (vr(O + 12, 4), vT1))
        a.label("K2_YNOA")
        e("s_and_b32 s%d, s%d, 3" % (sT0, sU))
        e("s_mul_i32 s%d, s%d, %d" % (sT0, sT0, YU))
        e("v_add_u32 v%d, s%d, v%d" % (vW0, sT0, vB0))
        e("v_xor_b32 v%d, 64, v%d" % (vW1, vW0))
        e("s_mul_i32 s%d, s%d, 14" % (sY, sJw))
        e("s_lshl_b32 s%d, s%d, 1" % (sT0, sNu))
        e("s_add_u32 s%d, s%d, s%d" % (sY, sY, sT0))
        e("s_lshl_b32 s%d, s%d, 4" % (sY, sY))
        e("s_add_u32 s%d, s%d, s%d" % (sY, sY, sH))
        e("s_lshl_b32 s%d, s%d, 11" % (sY, sY))
        e("s_add_u32 s%d, s%d, 0x%x" % (sY, sY, WS_Y))
        NWF, DIST = 16, 6

        def wrd(m):
            nb, ks = m // 18, m % 18
            return ["ds_read_b64_tr_b16 %s, v%d offset:%d" % (vr(Q + 4 * (m % NWF) + 2 * u, 2), vW1 if nb else vW0, ks * 2048 + u * 1024)
                    for u in range(2)]

        def bfrag(ks):
            return vr(O + 16 * (ks >> 1) + 4 * (ks & 1), 4) if ks < 16 else vr(O + 8 + 4 * (ks - 16), 4)

        def ystore(nb):
            ops = []
            for r in range(8):
                ops.append("v_cvt_pk_bf16_f32 v%d, v%d, v%d" % (FR + 8 * nb + r, S[nb] + 2 * r, S[nb] + 2 * r + 1))
            for t in range(2):
                ops.append("buffer_store_dwordx4 %s, v%d, %s, s%d offen offset:%d sc1" % (vr(FR + 8 * nb + 4 * t, 4), vL16, WSR, sY, t * 1024))
            return ops
        for m in range(DIST):
            for f in wrd(m):
                e(f)
        st0 = ystore(0)
        for m in range(36):
            nb, ks = m // 18, m % 18
            e("s_waitcnt lgkmcnt(%d)" % (2 * min(DIST - 1, 35 - m)))
            e("v_mfma_f32_32x32x16_bf16 %s, %s, %s, %s" % (vr(S[nb], 16), vr(Q + 4 * (m % NWF), 4), bfrag(ks), "0" if ks == 0 else vr(S[nb], 16)))
            if m + DIST < 36:
                for f in wrd(m + DIST):
                    e(f)
            if 23 <= m < 33:
                e(st0[m - 23])
        e("s_add_u32 s%d, s%d, 32768" % (sY, sY))
        e("s_add_u32 s%d, s%d, 1" % (sU, sU))
        e("s_add_u32 s%d, s%d, 1" % (sNu, sNu))
        e("s_cmp_ge_u32 s%d, 7" % sNu)
        e("s_cselect_b32 s%d, 0, s%d" % (sNu, sNu))
        e("s_nop 7")
        for f in ystore(1):
            e(f)
        e("s_cmp_lt_u32 s%d, 7" % sU)
        e("s_cbranch_scc1 K2_YLOOP")
        if RED:
            e("v_mov_b32 v0, v%d" % vL16)
            e("s_branch K2_RED")
    e("s_branch K2_DONE")

    a.label("K2_PUBLISH")
    e("s_mov_b32 s%d, s%d" % (sQb, sI))
    e("s_mov_b32 s%d, 0" % sKb0)
    e("s_lshl_b32 s%d, s%d, 2" % (sKb1, sI))
    e("s_add_u32 s%d, s%d, 4" % (sKb1, sKb1))
    e("s_mov_b32 s%d, 0" % sMode)
    load_q()
    e("s_mov_b32 s%d, s%d" % (sT0, sPart))
    for c in range(32):
        if c and c % 4 == 0:
            e("s_add_u32 s%d, s%d, 4096" % (sT0, sT0))
        e("buffer_store_dwordx4 %s, v%d, %s, s%d offen offset:%d sc1" % (vr(O + 4 * c, 4), vL16, WSR, sT0, (c % 4) * 1024))
    e("s_add_u32 s%d, s%d, 4096" % (sT0, sT0))
    e("v_mov_b32 v%d, v%d" % (S[0], vMc))
    e("v_mov_b32 v%d, v%d" % (S[0] + 1, vL))
    e("v_mov_b32 v%d, 0" % (S[0] + 2))
    e("v_mov_b32 v%d, 0" % (S[0] + 3))
    e("buffer_store_dwordx4 %s, v%d, %s, s%d offen sc1" % (vr(S[0], 4), vL16, WSR, sT0))
    e("s_mov_b32 s%d, 2" % sPend)
    e("s_nop 1")
    e("s_branch K2_SEG")

    a.label("K2_COMBINE")
    e("v_mov_b32 v%d, 0" % vT2)
    e("s_mov_b32 s%d, 0x40000" % sSpin)
    e("s_waitcnt vmcnt(0)")
    e("v_readfirstlane_b32 s%d, v%d" % (sT0, vTm))
    e("s_cmp_eq_u32 s%d, 1" % sT0)
    e("s_cbranch_scc1 K2_POLL_OK")
    a.label("K2_POLL")
    e("buffer_load_dword v%d, v%d, %s, s%d offen sc1" % (vT1, vT2, WSR, sFlag))
    e("s_waitcnt vmcnt(0)")
    e("v_readfirstlane_b32 s%d, v%d" % (sT0, vT1))
    e("s_cmp_eq_u32 s%d, 1" % sT0)
    e("s_cbranch_scc1 K2_POLL_OK")
    e("s_sleep 2")
    e("s_sub_u32 s%d, s%d, 1" % (sSpin, sSpin))
    e("s_cmp_lg_u32 s%d, 0" % sSpin)
    e("s_cbranch_scc1 K2_POLL")
    a.label("K2_POLL_OK")
    e("s_waitcnt lgkmcnt(0)")
    e("s_add_u32 s%d, s%d, 32768" % (sT0, sPart))
    e("buffer_load_dwordx4 %s, v%d, %s, s%d offen sc1" % (vr(FR, 4), vL16, WSR, sT0))
    e("s_mov_b32 s%d, s%d" % (sT0, sPart))

    def load_half(hf):
        for c in range(16):
            if c and c % 4 == 0:
                e("s_add_u32 s%d, s%d, 4096" % (sT0, sT0))
            e("buffer_load_dwordx4 %s, v%d, %s, s%d offen offset:%d sc1" % (vr(Q + 4 * c, 4), vL16, WSR, sT0, (c % 4) * 1024))
        e("s_add_u32 s%d, s%d, 4096" % (sT0, sT0))
    load_half(0)
    e("s_waitcnt vmcnt(16)")
    e("v_max_f32 v%d, v%d, v%d" % (vTm, vMc, FR))
    e("v_sub_f32 v%d, v%d, v%d" % (vT1, vMc, vTm))
    e("v_sub_f32 v%d, v%d, v%d" % (vT2, FR, vTm))
    e("v_exp_f32 v%d, v%d" % (vT1, vT1))
    e("v_exp_f32 v%d, v%d" % (vT2, vT2))
    e("s_nop 0")
    e("v_mul_f32 v%d, v%d, v%d" % (vL, vL, vT1))
    e("v_fma_f32 v%d, v%d, v%d, v%d" % (vL, FR + 1, vT2, vL))
    e("v_rcp_f32 v%d, v%d" % (vL, vL))
    e("s_nop 0")
    e("v_mul_f32 v%d, v%d, v%d" % (vL, vL, vThr))
    e("v_mul_f32 v%d, v%d, v%d" % (vT1, vT1, vL))
    e("v_mul_f32 v%d, v%d, v%d" % (vT2, vT2, vL))
    for hf in range(2):
        e("s_waitcnt vmcnt(0)")
        for r in range(64):
            e("v_mul_f32 v%d, v%d, v%d" % (O + 64 * hf + r, O + 64 * hf + r, vT1))
            e("v_fma_f32 v%d, v%d, v%d, v%d" % (O + 64 * hf + r, Q + r, vT2, O + 64 * hf + r))
        if hf == 0:
            load_half(1)
        for db in range(4 * hf, 4 * hf + 4):
            store_ctx(db)
    e("s_branch K2_NEXT")

    a.label("K2_DONE")
    if STAMP:
        e("s_waitcnt vmcnt(0)")
    stamp(a, 4); stamp(a, 7)
    if BW:
        e("s_waitcnt lgkmcnt(0)")
        e("s_add_u32 s78, s72, s60")
        e("s_addc_u32 s79, s73, 0")
    stamp(a, 9, real=True)
    stamp_dump(a, 10, SWS, sW, sT0, kidx=1, wave=int(os.environ.get("K2WAVE", "3")))
    e("s_endpgm")

    a.label("K2_AWAVE")
    if int(os.environ.get("APRIO", "1")):
        e("s_setprio %d" % int(os.environ.get("APRIO", "1")))
    AO, NM, AQ = 0, 16, 32
    AS = [40, 56]
    KF = [72, 80]
    VF = 88
    aL16, aDma, aK, aV, aTm, aT1, aT2, aG, aPF, aPFs, aPFm, aPFb, aPFd, aDm2 = range(96, 110)
    sWa, sQ32, sA, sKVA, sThr, sKsrc, sVsrc, sAsrc, sWoffA = 40, 41, 42, 43, 44, 45, 46, 47, 48
    sKt, sVt = 49, 50
    e("s_sub_u32 s%d, s%d, 4" % (sWa, sW))
    e("s_mov_b32 s68, s66")
    e("s_mov_b32 s69, s67")
    e("s_mov_b32 s70, 0x%x" % NB['wo'])
    e("s_mov_b32 s71, 0x20000")
    e("s_mov_b32 s66, 0x%x" % NB['wob'])
    e("s_mov_b32 s67, 0x20000")
    e("v_lshlrev_b32 v%d, 4, v2" % aL16)
    e("s_lshl_b32 s%d, s%d, 12" % (sWoff, sWa))
    e("s_lshl_b32 s%d, s%d, 11" % (sWoffA, sWa))
    e("v_add_u32 v%d, s%d, v%d" % (aDma, sWoff, aL16))
    e("v_add_u32 v%d, s%d, v%d" % (aDm2, sWoffA, aL16))
    e("v_add_u32 v%d, 0x%x, v%d" % (aK, LDS_A, aL16))
    e("v_lshrrev_b32 v3, 5, v2")
    e("v_bfe_u32 v4, v2, 2, 2")
    e("v_lshl_add_u32 v3, v3, 2, v4")
    e("v_lshlrev_b32 v3, 6, v3")
    e("v_bfe_u32 v4, v2, 4, 1")
    e("v_and_b32 v5, 1, v2")
    e("v_lshl_add_u32 v4, v4, 1, v5")
    e("v_bfe_u32 v5, v2, 1, 1")
    e("v_lshl_add_u32 v4, v4, 1, v5")
    e("v_lshl_add_u32 v3, v4, 3, v3")
    e("v_add_u32 v%d, 0x%x, v3" % (aV, LDS_A + 2048))
    e("s_sub_u32 s%d, 15, s%d" % (sT0, sI))
    e("s_cmp_eq_u32 s%d, 0" % sRole)
    e("s_cselect_b32 s%d, s%d, s%d" % (sT0, sI, sT0))
    e("s_lshl_b32 s%d, s%d, 2" % (sQ32, sT0))
    e("s_add_u32 s%d, s%d, s%d" % (sQ32, sQ32, sWa))
    e("s_lshl_b32 s%d, s%d, 18" % (sKVA, sH))
    e("s_add_u32 s%d, s%d, 0x%x" % (sKVA, sKVA, WS_KVA))
    e("s_mov_b32 s%d, %s" % (sThr, f32hex(THR)))
    e("v_and_b32 v3, 7, v2")
    e("s_lshl_b32 s%d, s%d, 5" % (sT1, sI))
    e("s_lshl_b32 s%d, s%d, 3" % (sT2, sWa))
    e("s_add_u32 s%d, s%d, s%d" % (sT1, sT1, sT2))
    e("v_add_u32 v3, s%d, v3" % sT1)
    e("v_lshlrev_b32 v3, 7, v3")
    e("s_mul_i32 s%d, s%d, %d" % (sT1, sRole, SPLIT))
    e("s_sub_u32 s%d, %d, s%d" % (sT1, SPLIT, sT1))
    e("s_lshl_b32 s%d, s%d, 15" % (sT1, sT1))
    e("v_add_u32 v3, s%d, v3" % sT1)
    e("s_lshl_b32 s%d, s%d, 2" % (sT1, sT0))
    e("s_add_u32 s%d, s%d, s%d" % (sT1, sT1, sWa))
    e("s_lshl_b32 s%d, s%d, 7" % (sT1, sT1))
    e("v_mov_b32 v4, s%d" % sT1)
    e("v_and_b32 v5, 8, v2")
    e("v_cmp_ne_u32 vcc, 0, v5")
    e("s_nop 1")
    e("v_cndmask_b32 v%d, v3, v4, vcc" % aPF)
    e("v_mov_b32 v3, 0x8000"); e("v_mov_b32 v4, 0x2000")
    e("v_cndmask_b32 v%d, v3, v4, vcc" % aPFs)
    e("v_mov_b32 v3, 0x1fffff"); e("v_mov_b32 v4, 0x3ffff")
    e("v_cndmask_b32 v%d, v3, v4, vcc" % aPFm)
    e("v_mov_b32 v3, s%d" % sKV); e("v_mov_b32 v4, s%d" % sKVA)
    e("v_cndmask_b32 v%d, v3, v4, vcc" % aPFb)

    def pf():
        return ["v_add_u32 v%d, v%d, v%d" % (aT2, aPFb, aPF),
                "v_add_u32 v%d, v%d, v%d" % (aPF, aPF, aPFs),
                "buffer_load_dword v%d, v%d, %s, 0 offen" % (aPFd, aT2, WSR),
                "v_and_b32 v%d, v%d, v%d" % (aPF, aPF, aPFm)]


    def dmaB(isV, slot):
        sSrc, sIdx = (sVsrc, sVt) if isV else (sKsrc, sKt)
        base = 0x10000 if isV else 0
        f = []
        if slot is None:
            f.append("s_and_b32 s%d, s%d, 3" % (sT0, sIdx))
            f.append("s_lshl_b32 s%d, s%d, 14" % (sT0, sT0))
            f.append("s_add_u32 s%d, s%d, s%d" % (sT0, sT0, sWoff))
            f.append("s_add_u32 m0, s%d, 0x%x" % (sT0, base))
        else:
            f.append("s_add_u32 m0, s%d, 0x%x" % (sWoff, base + slot * 16384))
        f.append("s_cmp_lt_u32 s%d, s%d" % (sIdx, sTT))
        f.append("s_cselect_b32 s%d, s%d, 0x7ff00000" % (sT1, sSrc))
        for p in range(4):
            f.append("buffer_load_dwordx4 v%d, %s, s%d offen offset:%d lds" % (aDma, WSR, sT1, p * 1024))
        f.append("s_add_u32 s%d, s%d, 1" % (sIdx, sIdx))
        f.append("s_add_u32 s%d, s%d, 0x8000" % (sSrc, sSrc))
        f.append("s_add_u32 s%d, s%d, 0x%x" % (sT1, sKV, 0x4000 if isV else 0))
        f.append("s_cmp_eq_u32 s%d, s%d" % (sIdx, sN1))
        f.append("s_cselect_b32 s%d, s%d, s%d" % (sSrc, sT1, sSrc))
        return f

    def dmaA(slot, oob=False):
        f = ["s_add_u32 m0, s%d, 0x%x" % (sWoffA, LDS_A + slot * 8192)]
        f.append("s_cmp_lt_u32 s%d, s%d" % (sAsrc, sA))
        f.append("s_cselect_b32 s%d, s%d, 0x7ff00000" % (sT1, sAsrc))
        for p in range(2):
            f.append("buffer_load_dwordx4 v%d, %s, s%d offen offset:%d lds" % (aDm2, WSR, sT1, p * 1024))
        f.append("s_add_u32 s%d, s%d, 0x2000" % (sAsrc, sAsrc))
        return f

    e("s_lshl_b32 s%d, s%d, 15" % (sKsrc, sKb0a))
    e("s_add_u32 s%d, s%d, s%d" % (sKsrc, sKsrc, sKV))
    e("s_add_u32 s%d, s%d, 0x4000" % (sVsrc, sKsrc))
    e("s_mov_b32 s%d, 0" % sKt)
    e("s_mov_b32 s%d, 0" % sVt)
    e("s_mov_b32 s%d, s%d" % (sAsrc, sKVA))
    e("s_add_u32 s%d, s%d, 0x40000" % (sA, sKVA))
    e("s_lshl_b32 s%d, s%d, 6" % (sT0, sH))
    e("s_add_u32 s%d, s%d, s%d" % (sT0, sT0, sQ32))
    e("s_lshl_b32 s%d, s%d, 11" % (sT0, sT0))
    e("s_add_u32 s%d, s%d, 0x%x" % (sT0, sT0, WS_QA))
    for s in range(2):
        e("buffer_load_dwordx4 %s, v%d, %s, s%d offen offset:%d" % (vr(AQ + 4 * s, 4), aL16, WSR, sT0, s * 1024))
    e("v_and_b32 v3, 31, v2")
    e("v_lshlrev_b32 v3, 2, v3")
    e("s_lshl_b32 s%d, s%d, 7" % (sT0, sQ32))
    e("s_add_u32 s%d, s%d, 0x%x" % (sT0, sT0, WS_G))
    e("buffer_load_dword v%d, v3, %s, s%d offen" % (aG, WSR, sT0))
    pro = dmaB(0, 0) + dmaA(0)
    pro += dmaB(0, 1) + dmaA(1) + dmaB(1, 0)
    pro += ["s_nop 0"] * 0
    pro2 = dmaB(0, 2) + dmaA(2) + dmaB(1, 1)
    for f in pro + pro2:
        e(f)
    for r in range(16):
        e("v_mov_b32 v%d, 0" % (AO + r))

    def kread(kf, slot, tile):
        return ["ds_read_b128 %s, v%d offset:%d" % (vr(KF[kf] + 4 * s, 4), aK, slot * 8192 + tile * 4096 + s * 1024) for s in range(2)]

    def vread(slot, tile):
        return ["ds_read_b64_tr_b16 %s, v%d offset:%d" % (vr(VF + 4 * t + 2 * u, 2), aV, slot * 8192 + tile * 4096 + t * 1024 + u * 512)
                for t in range(2) for u in range(2)]

    def qk(sb, kf, cz=False):
        return ["v_mfma_f32_32x32x16_bf16 %s, %s, %s, %s" % (vr(AS[sb], 16), vr(KF[kf], 4), vr(AQ, 4), "0" if cz else vr(NM, 16)),
                "v_mfma_f32_32x32x16_bf16 %s, %s, %s, %s" % (vr(AS[sb], 16), vr(KF[kf] + 4, 4), vr(AQ + 4, 4), vr(AS[sb], 16))]

    def amaxops(sb):
        b = AS[sb]
        ops = ["v_max3_f32 v%d, v%d, v%d, v%d" % (aTm, b, b + 1, b + 2)]
        for k in range(3, 15, 2):
            ops.append("v_max3_f32 v%d, v%d, v%d, v%d" % (aTm, aTm, b + k, b + k + 1))
        ops.append("v_max_f32 v%d, v%d, v%d" % (aTm, aTm, b + 15))
        return ops

    def xhalf_max():
        e("v_mov_b32 v%d, v%d" % (aT1, aTm))
        e("s_nop 1")
        e("v_permlane32_swap_b32 v%d, v%d" % (aTm, aT1))
        e("s_nop 1")
        e("v_max_f32 v%d, v%d, v%d" % (aTm, aTm, aT1))

    aslow = []
    sAi = 51
    e("s_mov_b32 s%d, 0" % sAi)
    e("s_mov_b32 s52, 0x7ff00000")
    a.label("K2A_LOOP")
    for ph in range(4):
        e("s_waitcnt vmcnt(14) lgkmcnt(0)")
        e("s_barrier")
        dm = dmaB(0, (ph + 3) & 3) + dmaA((ph + 3) & 3) + dmaB(1, (ph + 2) & 3)
        if ph == 0:
            lab = a.newlabel("K2A_NOINIT")
            e("s_cmp_lg_u32 s%d, 0" % sAi)
            e("s_cbranch_scc1 %s" % lab)
            for f in kread(0, 0, 0) + kread(1, 0, 1):
                e(f)
            e("s_waitcnt lgkmcnt(2)")
            for m in qk(0, 0, cz=True):
                e(m)
            e("s_nop 7")
            e("s_nop 7")
            for op in amaxops(0):
                e(op)
            xhalf_max()
            for r in range(16):
                e("v_sub_f32 v%d, v%d, v%d" % (AS[0] + r, AS[0] + r, aTm))
                e("v_sub_f32 v%d, 0, v%d" % (NM + r, aTm))
            e("s_nop 1")
            a.label(lab)
        half = (len(dm) + 1) // 2
        if os.environ.get("NOA"):
            for f in dm:
                e(f)
            continue
        if os.environ.get("NODMA"):
            dm = [f.replace("s%d offen offset" % sT1, "s52 offen offset") for f in dm]
        for tl in range(2):
            cur, nxt = tl, 1 - tl
            b = AS[cur]
            dmi = dm[:half] if tl == 0 else dm[half:]
            e("s_waitcnt lgkmcnt(0)")
            m = qk(nxt, nxt)
            e(m[0])
            for f in vread(ph, tl):
                e(f)
            e(m[1])
            for f in kread(cur, (ph + 1) & 3, tl):
                e(f)
            k2 = 0
            for i in range(16 + 2):
                if i < 16:
                    e("v_exp_f32 v%d, v%d" % (b + i, b + i))
                k = i - 2
                if k >= 0 and (k & 1):
                    e("v_cvt_pk_bf16_f32 v%d, v%d, v%d" % (b + (k >> 1), b + k - 1, b + k))
                tgt = ((i + 1) * len(dmi)) // 18
                while k2 < tgt:
                    e(dmi[k2]); k2 += 1
            mo = amaxops(nxt)
            e(mo[0])
            e("s_waitcnt lgkmcnt(2)")
            e("v_mfma_f32_32x32x16_bf16 %s, %s, %s, %s" % (vr(AO, 16), vr(VF, 4), vr(b, 4), vr(AO, 16)))
            for op in mo[1:5]:
                e(op)
            e("v_mfma_f32_32x32x16_bf16 %s, %s, %s, %s" % (vr(AO, 16), vr(VF + 4, 4), vr(b + 4, 4), vr(AO, 16)))
            for op in mo[5:]:
                e(op)
            e("v_cmp_lt_f32 vcc, s%d, v%d" % (sThr, aTm))
            e("s_cbranch_vccnz K2A_SLOW%d_%d" % (ph, tl))
            a.label("K2A_BACK%d_%d" % (ph, tl))
            aslow.append((ph, tl, nxt))
    e("s_add_u32 s%d, s%d, 4" % (sAi, sAi))
    if YF:
        e("s_cmp_lg_u32 s%d, %d" % (sAi, int(os.environ.get("WPFA", "24"))))
        e("s_cbranch_scc1 K2A_NOWPF")
        e("s_bfe_u32 s%d, s2, 0x40004" % sT0)
        e("s_lshl_b32 s%d, s%d, 2" % (sT0, sT0))
        e("s_add_u32 s%d, s%d, s%d" % (sT0, sT0, sWa))
        e("v_lshrrev_b32 v%d, 4, v%d" % (aPF, aL16))
        e("v_min_u32 v%d, 27, v%d" % (aPFs, aPF))
        e("v_lshlrev_b32 v%d, 7, v%d" % (aPFs, aPFs))
        e("s_mul_i32 s%d, s%d, 229376" % (sT1, sH))
        e("s_mul_i32 s%d, s%d, 3584" % (sT2, sT0))
        e("s_add_u32 s%d, s%d, s%d" % (sT1, sT1, sT2))
        e("buffer_load_dword v%d, v%d, s[64:67], s%d offen" % (aPFd, aPFs, sT1))
        e("v_min_u32 v%d, 3, v%d" % (aPFs, aPF))
        e("v_lshlrev_b32 v%d, 7, v%d" % (aPFs, aPFs))
        e("s_mul_i32 s%d, s%d, 25088" % (sT1, sH))
        e("s_lshl_b32 s%d, s%d, 9" % (sT2, sT0))
        e("s_add_u32 s%d, s%d, s%d" % (sT1, sT1, sT2))
        e("buffer_load_dword v%d, v%d, s[68:71], s%d offen" % (aPFd, aPFs, sT1))
        a.label("K2A_NOWPF")
    e("s_cmp_lt_u32 s%d, 32" % sAi)
    e("s_cbranch_scc1 K2A_LOOP")
    e("s_lshl_b32 s%d, s%d, 3" % (sT0, sH))
    e("s_add_u32 s%d, s%d, s%d" % (sT0, sT0, sI))
    e("s_lshl_b32 s%d, s%d, 2" % (sT0, sT0))
    e("s_add_u32 s%d, s%d, s%d" % (sT0, sT0, sWa))
    e("s_mul_i32 s%d, s%d, %d" % (sPart, sT0, PART_WAVE))
    e("s_add_u32 s%d, s%d, 0x%x" % (sPart, sPart, WS_PART))
    e("s_lshl_b32 s%d, s%d, 7" % (sFlag, sT0))
    e("s_add_u32 s%d, s%d, 0x%x" % (sFlag, sFlag, WS_FLAG))
    e("v_mov_b32 v%d, 0" % aPF)
    e("buffer_load_dword v%d, v%d, %s, s%d offen sc1" % (aPFd, aPF, WSR, sFlag))
    e("s_nop 7")
    e("s_nop 7")
    e("v_mov_b32 v%d, v%d" % (aT1, AO + 12))
    e("v_mov_b32 v%d, v%d" % (aT2, AO + 12))
    e("s_nop 1")
    e("v_permlane32_swap_b32 v%d, v%d" % (aT1, aT2))
    e("s_nop 1")
    e("v_rcp_f32 v%d, v%d" % (aT2, aT2))
    e("s_nop 0")
    e("v_mul_f32 v%d, v%d, v%d" % (aT2, aT2, aG))
    for r in range(16):
        e("v_mul_f32 v%d, v%d, v%d" % (AO + r, AO + r, aT2))
    e("s_mov_b32 exec_lo, 0")
    for r in range(12, 16):
        e("v_mov_b32 v%d, 0" % (AO + r))
    e("s_mov_b32 exec_lo, -1")
    for r in range(8):
        e("v_cvt_pk_bf16_f32 v%d, v%d, v%d" % (AS[0] + r, AO + 2 * r, AO + 2 * r + 1))
    if not YF:
        e("s_mul_i32 s%d, s%d, 288" % (sT0, sQ32))
        e("s_lshl_b32 s%d, s%d, 1" % (sT1, sH))
        e("s_add_u32 s%d, s%d, s%d" % (sT0, sT0, sT1))
        e("s_add_u32 s%d, s%d, 256" % (sT0, sT0))
        e("s_lshl_b32 s%d, s%d, 10" % (sT0, sT0))
        e("s_add_u32 s%d, s%d, 0x%x" % (sT0, sT0, WS_CTX))
        for t in range(2):
            e("buffer_store_dwordx4 %s, v%d, %s, s%d offen offset:%d" % (vr(AS[0] + 4 * t, 4), aL16, WSR, sT0, t * 1024))
    if int(os.environ.get("PPF", "0")):
        e("s_cmp_lg_u32 s%d, 2" % sMode)
        e("s_cbranch_scc1 K2A_TAIL")
        e("s_waitcnt vmcnt(0)")
        e("v_readfirstlane_b32 s%d, v%d" % (sT0, aPFd))
        e("s_cmp_lg_u32 s%d, 1" % sT0)
        e("s_cbranch_scc1 K2A_TAIL")
        e("v_lshlrev_b32 v%d, 3, v%d" % (aPF, aL16))
        for k in range(5):
            if k == 4:
                e("v_and_b32 v%d, 0x380, v%d" % (aPF, aPF))
            e("buffer_load_dword v%d, v%d, %s, s%d offen" % (aPFd, aPF, WSR, sPart))
            e("s_add_u32 s%d, s%d, 8192" % (sPart, sPart))
    a.label("K2A_TAIL")
    e("s_cmp_gt_u32 s%d, s%d" % (sAi, sTT))
    e("s_cbranch_scc1 K2A_Y")
    e("s_waitcnt vmcnt(8)")
    e("s_barrier")
    for f in dmaB(0, None) + dmaB(1, None):
        e(f)
    e("s_add_u32 s%d, s%d, 1" % (sAi, sAi))
    e("s_branch K2A_TAIL")
    a.label("K2A_Y")
    if YF:
        SWB, SWA = 64, 68
        yV = 110
        sU, sNu, sRowB, sRowA = sKsrc, sVsrc, sAsrc, sA
        e("v_lshrrev_b32 v2, 4, v%d" % aL16)
        e("v_lshrrev_b32 v3, 3, v2")
        e("v_and_b32 v4, 7, v2")
        e("v_bfe_u32 v5, v2, 4, 1")
        e("v_lshlrev_b32 v5, 2, v5")
        e("v_xor_b32 v4, v4, v5")
        e("v_lshlrev_b32 v4, 4, v4")
        e("v_mul_u32_u24 v3, 896, v3")
        e("v_add_u32 v%d, v3, v4" % yV)
        for p in range(1, 4):
            e("v_add_u32 v%d, %d, v%d" % (yV + p, p * (8 * 896 - 1024), yV))
        e("s_lshl_b32 s%d, s%d, 8" % (sRowB, sH))
        e("s_lshl_b32 s%d, s%d, 6" % (sT0, sWa))
        e("s_add_u32 s%d, s%d, s%d" % (sRowB, sRowB, sT0))
        e("s_mul_i32 s%d, s%d, 896" % (sRowB, sRowB))
        e("s_mul_i32 s%d, s%d, 28" % (sRowA, sH))
        e("s_lshl_b32 s%d, s%d, 3" % (sT0, sWa))
        e("s_add_u32 s%d, s%d, s%d" % (sRowA, sRowA, sT0))
        e("s_mul_i32 s%d, s%d, 896" % (sRowA, sRowA))
        e("s_sub_u32 s%d, s%d, 7" % (sT0, sI))
        e("s_cmp_ge_u32 s%d, 7" % sI)
        e("s_cselect_b32 s%d, s%d, s%d" % (sNu, sT0, sI))

        def yunit(slot):
            e("s_lshl_b32 s%d, s%d, 7" % (sT0, sNu))
            e("s_lshl_b32 s%d, s%d, 13" % (sT2, sWa))
            for g in range(2):
                e("s_add_u32 m0, s%d, %d" % (sT2, slot * YU + g * 4096))
                e("s_add_u32 s%d, s%d, s%d" % (sT1, sRowB, sT0))
                if g:
                    e("s_add_u32 s%d, s%d, %d" % (sT1, sT1, 32 * 896))
                for p in range(4):
                    e("buffer_load_dwordx4 v%d, %s, s%d offen offset:%d lds" % (yV + p, sr(SWB, 4), sT1, p * 1024))
            e("s_lshl_b32 s%d, s%d, 10" % (sT2, sWa))
            e("s_add_u32 m0, s%d, %d" % (sT2, slot * YU + 32768))
            e("s_add_u32 s%d, s%d, s%d" % (sT1, sRowA, sT0))
            e("buffer_load_dwordx4 v%d, %s, s%d offen lds" % (yV, sr(SWA, 4), sT1))
            e("s_add_u32 s%d, s%d, 1" % (sNu, sNu))
            e("s_cmp_ge_u32 s%d, 7" % sNu)
            e("s_cselect_b32 s%d, 0, s%d" % (sNu, sNu))
        e("s_waitcnt vmcnt(0) lgkmcnt(0)")
        e("s_barrier")
        for u in range(4):
            yunit(u)
        e("s_lshl_b32 s%d, s%d, 11" % (sT0, sWa))
        e("s_add_u32 s%d, s%d, %d" % (sT0, sT0, 4 * YU))
        e("v_add_u32 v%d, s%d, v%d" % (aT1, sT0, aL16))
        e("ds_write_b128 v%d, %s" % (aT1, vr(AS[0], 4)))
        e("ds_write_b128 v%d, %s offset:1024" % (aT1, vr(AS[0] + 4, 4)))
        issued = 4
        for u in range(7):
            e("s_waitcnt vmcnt(%d) lgkmcnt(0)" % (9 * (issued - u - 1)))
            e("s_barrier")
            if u >= 1 and issued < 7:
                yunit(issued & 3)
                issued += 1
    if YF and RED:
        e("v_mov_b32 v0, v%d" % aL16)
        a.label("K2_RED")
        sQf, sCnt, sIdx, sW4, sNbt = 40, 41, 42, 43, 45
        e("s_sub_u32 s%d, 15, s%d" % (sQf, sI))
        e("s_cmp_eq_u32 s%d, 0" % sRole)
        e("s_cselect_b32 s%d, s%d, s%d" % (sQf, sI, sQf))
        e("s_lshl_b32 s%d, s%d, 8" % (sCnt, sQf))
        e("s_add_u32 s%d, s%d, 0x%x" % (sCnt, sCnt, WS_FLAG + 65536))
        e("s_waitcnt vmcnt(0)")
        e("s_barrier")
        e("s_cmp_lg_u32 s%d, 7" % sW)
        e("s_cbranch_scc1 K2_RED_W")
        e("v_mov_b32 v1, 0")
        e("v_mov_b32 v2, 1")
        e("s_mov_b64 exec, 1")
        e("buffer_atomic_add v2, v1, %s, s%d offen sc1" % (WSR, sCnt))
        e("s_mov_b64 exec, -1")
        e("s_mov_b32 s%d, 0x40000" % sSpin)
        a.label("K2_RED_POLL")
        e("buffer_load_dword v2, v1, %s, s%d offen sc1" % (WSR, sCnt))
        e("s_waitcnt vmcnt(0)")
        e("v_readfirstlane_b32 s%d, v2" % sT0)
        e("s_cmp_ge_u32 s%d, 16" % sT0)
        e("s_cbranch_scc1 K2_RED_W")
        e("s_sleep 4")
        e("s_sub_u32 s%d, s%d, 1" % (sSpin, sSpin))
        e("s_cmp_lg_u32 s%d, 0" % sSpin)
        e("s_cbranch_scc1 K2_RED_POLL")
        a.label("K2_RED_W")
        e("s_mul_i32 s%d, s%d, 7" % (sIdx, sH))
        e("s_add_u32 s%d, s%d, s%d" % (sIdx, sIdx, sW))
        e("s_mul_i32 s%d, s%d, 2341" % (sW4, sIdx))
        e("s_lshr_b32 s%d, s%d, 16" % (sW4, sW4))
        e("s_mul_i32 s%d, s%d, 28" % (sT0, sW4))
        e("s_sub_u32 s%d, s%d, s%d" % (sNbt, sIdx, sT0))
        e("s_lshl_b32 s%d, s%d, 2" % (sT0, sQf))
        e("s_add_u32 s%d, s%d, s%d" % (sW4, sW4, sT0))
        e("s_mul_i32 s%d, s%d, 14" % (sT0, sW4))
        e("s_lshr_b32 s%d, s%d, 1" % (sT1, sNbt))
        e("s_add_u32 s%d, s%d, s%d" % (sT0, sT0, sT1))
        e("s_lshl_b32 s%d, s%d, 15" % (sT0, sT0))
        e("s_and_b32 s%d, s%d, 1" % (sT1, sNbt))
        e("s_lshl_b32 s%d, s%d, 10" % (sT1, sT1))
        e("s_add_u32 s%d, s%d, s%d" % (sT0, sT0, sT1))
        e("s_add_u32 s%d, s%d, 0x%x" % (sT0, sT0, WS_Y))
        e("s_mov_b32 s48, s62")
        e("s_mov_b32 s49, s63")
        e("s_mov_b32 s50, 0x%x" % NB['out'])
        e("s_mov_b32 s51, 0x20000")
        e("s_mul_i32 s%d, s%d, %d" % (sT2, sW4, 32 * 896))
        e("s_lshl_b32 s%d, s%d, 5" % (sT1, sNbt))
        e("s_add_u32 s%d, s%d, s%d" % (sT2, sT2, sT1))
        e("v_bfe_u32 v3, v0, 4, 5")
        e("v_mul_u32_u24 v3, 896, v3")
        e("v_lshrrev_b32 v4, 9, v0")
        e("v_lshl_add_u32 v3, v4, 3, v3")
        e("s_barrier")
        e("s_cmp_ge_u32 s%d, 7" % sW)
        e("s_cbranch_scc1 K2_DONE")
        for h in range(16):
            if h and h % 2 == 0:
                e("s_add_u32 s%d, s%d, 4096" % (sT0, sT0))
            e("buffer_load_dwordx4 %s, v0, %s, s%d offen offset:%d sc1" % (vr(32 + 4 * h, 4), WSR, sT0, (h & 1) * 2048))
        for h in range(16):
            e("s_waitcnt vmcnt(%d)" % (15 - h))
            for r in range(4):
                src = 32 + 4 * h + r
                if h == 0:
                    e("v_lshlrev_b32 v%d, 16, v%d" % (8 + 2 * r, src))
                    e("v_and_b32 v%d, 0xffff0000, v%d" % (9 + 2 * r, src))
                else:
                    e("v_lshlrev_b32 v5, 16, v%d" % src)
                    e("v_and_b32 v6, 0xffff0000, v%d" % src)
                    e("v_add_f32 v%d, v%d, v5" % (8 + 2 * r, 8 + 2 * r))
                    e("v_add_f32 v%d, v%d, v6" % (9 + 2 * r, 9 + 2 * r))
        for r in range(4):
            e("v_cvt_pk_bf16_f32 v%d, v%d, v%d" % (16 + r, 8 + 2 * r, 9 + 2 * r))
        for i in range(2):
            e("buffer_store_dwordx2 %s, v3, s[48:51], s%d offen offset:%d" % (vr(16 + 2 * i, 2), sT2, i * 16))
        e("s_branch K2_DONE")
    e("s_branch K2_DONE" if BW else "s_branch K2_END")
    for ph, tl, sb in aslow:
        a.label("K2A_SLOW%d_%d" % (ph, tl))
        e("s_nop 7")
        e("s_nop 7")
        xhalf_max()
        e("v_max_f32 v%d, 0, v%d" % (aTm, aTm))
        e("v_sub_f32 v%d, 0, v%d" % (aT1, aTm))
        e("v_exp_f32 v%d, v%d" % (aT1, aT1))
        for r in range(16):
            e("v_sub_f32 v%d, v%d, v%d" % (AS[sb] + r, AS[sb] + r, aTm))
            e("v_sub_f32 v%d, v%d, v%d" % (NM + r, NM + r, aTm))
            e("v_mul_f32 v%d, v%d, v%d" % (AO + r, AO + r, aT1))
        e("s_nop 1")
        e("s_branch K2A_BACK%d_%d" % (ph, tl))
    a.label("K2_END")
    e("s_endpgm")
    return kernel_desc(name, 256, 96, 256)
```
